```python
import torch

def _softmax(x, axis=-1):
    return torch.softmax(x, dim=axis)

def _gelu(x):
    return torch.nn.functional.gelu(x, approximate='tanh')

def _silu(x):
    return torch.nn.functional.silu(x)

def _sigmoid(x):
    return torch.sigmoid(x)

def _layernorm(x, axis=-1, eps=1e-05):
    m = x.mean(dim=axis, keepdim=True)
    v = x.var(dim=axis, keepdim=True, unbiased=False)
    return (x - m) / torch.sqrt(v + eps)

def _scatter_add(tgt, idx, src, axis=0):
    return tgt.clone().index_add_(axis, idx, src)

def _segment_sum(src, seg, n):
    out = torch.zeros((n,) + src.shape[1:], dtype=src.dtype)
    return out.index_add_(0, seg, src)

def _pad(x, pw):
    flat = tuple((v for pair in reversed(pw) for v in pair))
    return torch.nn.functional.pad(x, flat)
kernel_name = 'concat_heads__grouped_kv_mqa__memory_aug_recurrent_mem_tr__prompt'

def setup_inputs():

    _w = lambda a: (lambda t: t.to(torch.bfloat16) if t.is_floating_point() else t)(torch.as_tensor(a))

    def _A_setup():
        B, S, D, H = (1, 2048, 576, 32)
        Dh = D // H
        return {'x': _w((lambda *s: torch.randn(*s, dtype=torch.bfloat16) * 0.05)(B, S, D)), 'wq': _w((lambda *s: torch.randn(*s, dtype=torch.bfloat16) * 1.6)(D, H * Dh)), 'wk': _w((lambda *s: torch.randn(*s, dtype=torch.bfloat16) * 1.6)(D, Dh)), 'wv': _w((lambda *s: torch.randn(*s, dtype=torch.bfloat16) * 0.05)(D, Dh)), 'wo': _w((lambda *s: torch.randn(*s, dtype=torch.bfloat16) * 0.05)(H * Dh, D))}
    _A_in = _A_setup()

    def _B_setup():
        B, S, Dm = (1, 2048, 576)
        H, Dh = (32, 128)
        M, seg = (8, 32)
        seg = min(seg, S)
        S = S // seg * seg
        return {'x': _w((lambda *s: torch.randn(*s, dtype=torch.bfloat16) * 0.05)(B, S, Dm)), 'mem0': _w((lambda *s: torch.randn(*s, dtype=torch.bfloat16) * 0.8)(B, M, Dm)), 'Wq': _w((lambda *s: torch.randn(*s, dtype=torch.bfloat16) * 1.6)(Dm, H, Dh) * Dm ** (-0.5)), 'Wk': _w((lambda *s: torch.randn(*s, dtype=torch.bfloat16) * 1.6)(Dm, H, Dh) * Dm ** (-0.5)), 'Wv': _w((lambda *s: torch.randn(*s, dtype=torch.bfloat16) * 0.8)(Dm, H, Dh) * Dm ** (-0.5)), 'Wo': _w((lambda *s: torch.randn(*s, dtype=torch.bfloat16) * 0.8)(H, Dh, Dm) * (H * Dh) ** (-0.5)), 'seg_len': seg}
    _B_in = _B_setup()
    return {'A_x': _A_in['x'], 'A_wq': _A_in['wq'], 'A_wk': _A_in['wk'], 'A_wv': _A_in['wv'], 'A_wo': _A_in['wo'], 'B_x': _B_in['x'], 'B_mem0': _B_in['mem0'], 'B_Wq': _B_in['Wq'], 'B_Wk': _B_in['Wk'], 'B_Wv': _B_in['Wv'], 'B_Wo': _B_in['Wo'], 'B_seg_len': _B_in['seg_len']}

def reference(A_x, A_wq, A_wk, A_wv, A_wo, B_x, B_mem0, B_Wq, B_Wk, B_Wv, B_Wo, B_seg_len):

    def _A_ref(x, wq, wk, wv, wo):
        B, S, D = x.shape
        H = 32
        Dh = D // H
        q = (lambda x, *d: x.permute(*d))((x @ wq).reshape(B, S, H, Dh), 0, 2, 1, 3)
        k = x @ wk
        v = x @ wv
        scores = torch.einsum('bhqd,bkd->bhqk', q, k) * Dh ** (-0.5)
        p = _softmax(scores, axis=-1)
        o = torch.einsum('bhqk,bkd->bhqd', p, v)
        return (lambda x, *d: x.permute(*d))(o, 0, 2, 1, 3).reshape(B, S, H * Dh) @ wo

    def _B_ref(x, mem0, Wq, Wk, Wv, Wo, seg_len):
        B, S, Dm = x.shape
        H, Dh = (Wq.shape[1], Wq.shape[2])
        M = mem0.shape[1]
        scale = Dh ** (-0.5)
        n_seg = S // seg_len
        L = M + seg_len
        idx = torch.arange(L)
        mask = (idx[:, None] < M) | (idx[:, None] >= idx[None, :])
        mem = mem0
        outs = []
        for s in range(n_seg):
            xs = x[:, s * seg_len:(s + 1) * seg_len, :].clone()
            h = torch.concatenate([mem, xs], axis=1)
            q = torch.einsum('btd,dhe->bhte', h, Wq)
            k = torch.einsum('btd,dhe->bhte', h, Wk)
            v = torch.einsum('btd,dhe->bhte', h, Wv)
            scores = torch.einsum('bhqe,bhke->bhqk', q, k) * scale
            scores = torch.where(mask[None, None], scores, -1000000000.0)
            p = _softmax(scores, axis=-1)
            o = torch.einsum('bhqk,bhke->bhqe', p, v)
            o = torch.einsum('bhte,hed->btd', o, Wo)
            mem = o[:, :M, :].clone()
            outs.append(o[:, M:, :])
        return torch.concatenate(outs, axis=1)
    a = _A_ref(A_x, A_wq, A_wk, A_wv, A_wo)
    b = _B_ref(B_x, B_mem0, B_Wq, B_Wk, B_Wv, B_Wo, B_seg_len)
    return torch.concatenate([a, b], axis=-1)
```

```python
import re

TRANS = ("v_exp_f32", "v_log_f32", "v_rcp_f32", "v_rsq_f32", "v_sqrt_f32", "v_sin_f32", "v_cos_f32", "v_rcp_iflag_f32")

def _regs(tok):
    tok = tok.strip()
    tok = tok.lstrip("-")
    if tok.startswith("abs(") and tok.endswith(")"): tok = tok[4:-1]
    if tok.startswith("|") and tok.endswith("|"): tok = tok[1:-1]
    m = re.fullmatch(r"([vas])(\d+)", tok)
    if m: return {(m.group(1), int(m.group(2)))}
    m = re.fullmatch(r"([vas])\[(\d+):(\d+)\]", tok)
    if m: return {(m.group(1), i) for i in range(int(m.group(2)), int(m.group(3)) + 1)}
    if tok in ("vcc", "vcc_lo", "vcc_hi"): return {("x", "vcc")}
    if tok in ("exec", "exec_lo", "exec_hi"): return {("x", "exec")}
    if tok == "m0": return {("x", "m0")}
    return set()

class Ins:
    __slots__ = ("text", "op", "rd", "wr", "kind", "passes", "A", "B", "C", "D", "dpp", "label", "target", "uncond", "nop", "wide", "lds_dma", "sdata", "cmt")
    def __init__(self, text):
        self.text = text
        t = text.split(";")[0].strip()
        self.label = None; self.target = None; self.uncond = False; self.nop = 0
        self.rd = set(); self.wr = set(); self.kind = "other"; self.passes = 0
        self.A = self.B = self.C = self.D = set(); self.dpp = False; self.wide = False; self.lds_dma = False; self.sdata = set()
        if t.endswith(":"):
            self.label = t[:-1]; self.op = None; self.kind = "label"; return
        if not t or t.startswith("."):
            self.op = None; self.kind = "directive"; return
        parts = t.split(None, 1)
        op = self.op = parts[0]
        rest = parts[1] if len(parts) > 1 else ""
        rest = re.sub(r"\s+\w+:\[[^\]]*\]", "", rest)
        ops = [o.strip() for o in rest.split(",")] if rest else []
        mods = ""
        if ops:
            last = ops[-1].split()
            if len(last) > 1:
                ops[-1] = last[0]; mods = " ".join(last[1:])
        R = [_regs(o) for o in ops]
        if op == "s_nop":
            self.kind = "salu"; self.nop = int(ops[0], 0); return
        if op.startswith("s_cbranch") or op == "s_branch":
            self.kind = "branch"; self.target = ops[0]; self.uncond = (op == "s_branch")
            return
        if op == "s_endpgm":
            self.kind = "end"; self.uncond = True; return
        if op.startswith("v_mfma") or op.startswith("v_smfmac"):
            self.kind = "mfma"
            self.passes = 8 if "32x32" in op else 4
            self.D = R[0]; self.A = R[1]; self.B = R[2]
            if op.startswith("v_smfmac"):
                self.C = R[0]; self.A = R[1] | R[3]
            else:
                self.C = R[3]
            self.rd = self.A | self.B | self.C; self.wr = self.D
            return
        if op.startswith("v_"):
            self.kind = "valu"
            self.dpp = ("row_" in mods or "quad_perm" in t or "_dpp" in op)
            if op.startswith("v_cmp"):
                self.wr = R[0]; self.rd = set().union(*R[1:])
            elif op.startswith("v_permlane") and "swap" in op:
                self.wr = R[0] | R[1]; self.rd = R[0] | R[1]
            elif op.startswith(("v_add_co", "v_sub_co", "v_addc_co", "v_subb_co")):
                self.wr = R[0] | R[1]; self.rd = set().union(*R[2:])
            else:
                self.wr = R[0]; self.rd = set().union(*R[1:]) if len(R) > 1 else set()
                if op.startswith(("v_fmac", "v_pk_fmac", "v_writelane")) or self.dpp: self.rd |= R[0]
                if op.startswith("v_cndmask") and len(R) == 3: self.rd |= {("x", "vcc")}
            return
        if op.startswith("ds_"):
            self.kind = "ds"
            if op.startswith(("ds_read", "ds_bpermute", "ds_permute", "ds_swizzle")):
                self.wr = R[0]; self.rd = set().union(*R[1:])
            else:
                self.rd = set().union(*R)
            return
        if op.startswith(("buffer_", "global_", "flat_")):
            self.kind = "vmem"
            if op in ("buffer_inv", "buffer_wbl2"): return
            allm = (mods + " " + " ".join(ops)).split()
            if "lds" in allm or "load_lds" in op:
                self.lds_dma = True; self.rd = set().union(*R) | {("x", "m0")}
            elif "load" in op:
                self.wr = R[0]; self.rd = set().union(*R[1:])
            elif "atomic" in op:
                self.rd = set().union(*R)
                if "sc0" in allm:
                    self.wr = R[0]
                    if op.startswith("global"): self.rd = set().union(*R[1:])
            else:
                self.rd = set().union(*R)
                self.sdata = R[0] if op.startswith("buffer") else R[1]
                self.wide = ("x4" in op or "x3" in op)
            return
        if op.startswith("s_"):
            self.kind = "salu"
            if op.startswith(("s_cmp", "s_bitcmp", "s_waitcnt", "s_barrier", "s_sleep", "s_setprio", "s_setreg")):
                self.rd = set().union(*R) if R else set()
            elif op.startswith(("s_load", "s_buffer_load", "s_memtime", "s_memrealtime")):
                self.kind = "smem"; self.wr = R[0]; self.rd = set().union(*R[1:]) if len(R) > 1 else set()
            else:
                self.wr = R[0]; self.rd = set().union(*R[1:]) if len(R) > 1 else set()
                if "saveexec" in op: self.wr |= {("x", "exec")}; self.rd |= {("x", "exec")}
            return
        raise ValueError("cannot parse: " + text)

def _vec(s): return {r for r in s if r[0] in "va"}
def _sca(s): return {r for r in s if r[0] == "s" or r == ("x", "vcc")}

def need(P, I):
    n = 0
    if P.kind == "valu":
        w = _vec(P.wr)
        if w:
            if I.kind == "mfma" and w & I.rd: n = max(n, 2)
            if I.kind == "valu":
                if (I.dpp or I.op.startswith("v_permlane")) and w & I.rd: n = max(n, 2)
                if I.op.startswith(("v_readlane", "v_readfirstlane")) and w & I.rd: n = max(n, 1)
                if P.op.startswith(TRANS) and w & I.rd and not I.op.startswith(TRANS): n = max(n, 1)
        ws = _sca(P.wr)
        if ws:
            if I.kind in ("valu", "mfma") and ws & I.rd:
                n = max(n, 4 if I.op.startswith(("v_readlane", "v_writelane")) else 2)
            if I.kind == "vmem" and ws & I.rd: n = max(n, 5)
            if I.kind in ("salu", "smem") and ws & I.rd: n = max(n, 1)
        if ("x", "exec") in P.wr:
            n = max(n, 5 if I.kind in ("valu", "mfma") else 0)
    if P.kind == "mfma":
        p4 = (P.passes == 4)
        if I.kind == "mfma":
            if P.D & (I.A | I.B): n = max(n, 8 if p4 else 12)
            if P.D & I.C:
                if not (P.D == I.C and P.passes == I.passes): n = max(n, 6 if p4 else 10)
            elif P.D & I.D:
                n = max(n, 6 if p4 else 10)
        elif I.kind in ("valu", "vmem", "ds"):
            if P.D & (I.rd | I.wr): n = max(n, 8 if p4 else 12)
            if I.kind == "valu" and (P.C & I.wr): n = max(n, 3 if p4 else 7)
    if P.kind == "vmem" and P.wide and P.sdata & I.wr:
        n = max(n, 2 if I.kind in ("valu", "mfma") else 1)
    if P.kind == "salu" and ("x", "m0") in P.wr and I.kind == "vmem" and I.lds_dma: n = max(n, 1)
    return n

MAXW = 12

def fix_hazards(lines, filler=None):
    ins = [Ins(l) for l in lines]
    lab = {x.label: i for i, x in enumerate(ins) if x.label}
    preds = [[] for _ in ins]
    for i, x in enumerate(ins):
        if i + 1 < len(ins) and not x.uncond: preds[i + 1].append(i)
        if x.target is not None:
            preds[lab[x.target]].append(i)
    pad = [0] * len(ins)
    fill = []; cur = None
    for x in ins:
        if x.text.startswith(".filler"):
            cur = x.text[7:].strip() or None
        fill.append(cur)
    def slots(P, path):
        t = 0; free = P.passes
        for j in reversed(path):
            x = ins[j]
            if x.kind in ("label", "directive"): continue
            t += 1 + pad[j]
            if x.kind == "mfma":
                t = max(t, free); free = t + x.passes
            t += x.nop
        return t
    for i, I in enumerate(ins):
        if I.kind in ("label", "directive", "branch", "end") or I.op == "s_nop": continue
        short = 0
        stack = [(p, 0, ()) for p in preds[i]]; seen = {}
        while stack:
            j, d, path = stack.pop()
            P = ins[j]
            if P.kind not in ("label", "directive"):
                q = need(P, I)
                if q > d:
                    dd = slots(P, path) if P.kind == "mfma" else d
                    if q > dd: short = max(short, q - dd)
                d2 = d + 1 + P.nop + pad[j]
            else:
                d2 = d
            if d2 < MAXW:
                for p in preds[j]: stack.append((p, d2, path + (j,)))
        pad[i] = short
    out = []; total = 0
    for i, I in enumerate(ins):
        if pad[i]:
            if fill[i]: out += [f"{fill[i]}  ; hz"] * pad[i]
            else: out.append(f"s_nop {pad[i]-1}  ; hz")
            total += 1
        if not I.text.startswith(".filler"): out.append(I.text)
    return out, total

class Asm:
    def __init__(self):
        self.lines = []; self.nlab = 0
        self.lq = []; self.vq = []
    def __call__(self, s):
        for l in s.split("\n"):
            l = l.strip()
            if l: self.lines.append(l)
    def label(self, name): self.lines.append(name + ":")
    def newlabel(self, base="L"):
        self.nlab += 1; return f"{base}_{self.nlab}"
    def ds(self, text, tag=None):
        self(text); self.lq.append(tag)
    def vm(self, text, tag=None):
        self(text); self.vq.append(tag)
    def _wait(self, q, tags, name, mx):
        if isinstance(tags, str): tags = [tags]
        idx = [i for i, t in enumerate(q) if t in tags]
        if not idx: return q
        last = max(idx); n = len(q) - 1 - last
        n = min(n, mx)
        self(f"s_waitcnt {name}({n})")
        return q[len(q) - n:] if n else []
    def wl(self, *tags): self.lq = self._wait(self.lq, list(tags), "lgkmcnt", 15)
    def wv(self, *tags): self.vq = self._wait(self.vq, list(tags), "vmcnt", 63)
    def wl0(self):
        self("s_waitcnt lgkmcnt(0)"); self.lq = []
    def wv0(self):
        self("s_waitcnt vmcnt(0)"); self.vq = []
    def text(self):
        fixed, n = fix_hazards(self.lines)
        self.nhz = n
        return "\n".join((l if l.endswith(":") else "    " + l) for l in fixed) + "\n"

def v(a, n=1): return f"v{a}" if n == 1 else f"v[{a}:{a+n-1}]"
def ag(a, n=1): return f"a{a}" if n == 1 else f"a[{a}:{a+n-1}]"
def s(a, n=1): return f"s{a}" if n == 1 else f"s[{a}:{a+n-1}]"

def kernel_desc(name, vgpr, sgpr, accum, kernarg=120):
    return f""".amdhsa_kernel {name}
  .amdhsa_next_free_vgpr {vgpr}
  .amdhsa_next_free_sgpr {sgpr}
  .amdhsa_accum_offset {accum}
  .amdhsa_group_segment_fixed_size 0
  .amdhsa_kernarg_size {kernarg}
  .amdhsa_user_sgpr_count 2
  .amdhsa_user_sgpr_kernarg_segment_ptr 1
  .amdhsa_system_sgpr_workgroup_id_x 1
.end_amdhsa_kernel
"""
```

```python
from asmlib import *
from layout import *
import math, struct
def fbits(x): return struct.unpack("<I", struct.pack("<f", x))[0]

S_W = 21
A_TASK = 22
A_T0, A_T1, A_T2 = 24, 25, 26
A_K, A_HEAD, A_SPIN, A_SL, A_LO = 27, 28, 29, 30, 31
A_G0 = 32
A_WS = 36
A_XS = 40
A_OS = 44
S_DBG = 100
L16, LANE, TRA, TMP = 0, 1, 2, 4
XF = 16
ACC = 88
WF = 124
SLAB = 36864
LQ = 3 * SLAB
LO = LQ + 32768
OP = 1168
assert LO + 16 * OP <= 163840

def cvt(a, d, x, y): a(f"v_cvt_pk_bf16_f32 v{d}, v{x}, v{y}")
def m32(a, d, A, B, C="0"): a(f"v_mfma_f32_16x16x32_bf16 {v(d,4)}, {A}, {B}, {C}")

def skinny(a, tag, ptr_off):
    a(f"""
    s_load_dwordx2 s[{A_WS}:{A_WS+1}], s[0:1], {ptr_off}
    s_mul_i32 s{A_LO}, s{S_W}, 9216
    s_waitcnt lgkmcnt(0)
    s_mov_b32 s{A_WS+2}, 663552
    s_mov_b32 s{A_WS+3}, 0x20000
    """)
    def dma(k):
        for i in range(9):
            a(f"s_add_u32 m0, s{A_LO}, {(k % 3) * SLAB + i * 1024}\ns_add_u32 s{A_T0}, s{A_LO}, {k * SLAB + i * 1024}")
            a.vm(f"buffer_load_dwordx4 v{L16}, s[{A_WS}:{A_WS+3}], s{A_T0} offen lds", f"s{k}")
    a("s_barrier")
    dma(0); dma(1)
    for k in range(18):
        a.wv(f"s{k}")
        a("s_barrier")
        if k + 2 < 18: dma(k + 2)
        ad = TRA + (1 if k % 3 == 2 else 0); sb = (k % 3) * SLAB - (65536 if k % 3 == 2 else 0)
        for t in range(9):
            for hf in range(2):
                a.ds(f"ds_read_b64_tr_b16 {v(WF + 4*t + 2*hf, 2)}, v{ad} offset:{sb + t*32 + hf*4*1152}", f"w{t}")
        for t in range(9):
            a.wl(f"w{t}")
            m32(a, ACC + 4 * t, v(WF + 4 * t, 4), v(XF + 4 * k, 4), "0" if k == 0 else v(ACC + 4 * t, 4))

def task(a, Lend):
    tag = "a"
    T = TMP
    a(f"""
    s_load_dwordx2 s[{A_XS}:{A_XS+1}], s[0:1], 0
    s_load_dwordx2 s[{A_OS}:{A_OS+1}], s[0:1], 96
    s_cmp_lt_u32 s{S_W}, 2
    s_cselect_b32 s{A_T0}, 16, 24
    s_load_dwordx2 s[{A_WS}:{A_WS+1}], s[0:1], s{A_T0}
    v_lshrrev_b32 v{LANE}, 4, v{L16}
    v_and_b32 v{T}, 15, v{LANE}
    v_lshrrev_b32 v{T+1}, 4, v{LANE}
    s_movk_i32 s{A_T1}, 1152
    v_lshlrev_b32 v{T+2}, 4, v{T+1}
    v_mad_u32_u24 v{T+2}, v{T}, s{A_T1}, v{T+2}
    s_mul_i32 s{A_T2}, s{A_TASK}, {16*1152}
    s_mov_b64 s[{A_G0}:{A_G0+1}], 0xffff
    s_mov_b32 s{A_SPIN}, 0
    s_waitcnt lgkmcnt(0)
    s_mov_b32 s{A_XS+2}, 2359296
    s_mov_b32 s{A_XS+3}, 0x20000
    s_mov_b32 s{A_OS+2}, 4718592
    s_mov_b32 s{A_OS+3}, 0x20000
    s_mov_b32 s{A_WS+2}, 20736
    s_mov_b32 s{A_WS+3}, 0x20000
    """)
    for k in range(18): a.vm(f"buffer_load_dwordx4 {v(XF+4*k,4)}, v{T+2}, s[{A_XS}:{A_XS+3}], s{A_T2} offen offset:{64*k}", "x")
    GW = 160
    a(f"""
    s_and_b32 s{A_T0}, s{S_W}, 1
    s_lshl_b32 s{A_T0}, s{A_T0}, 4
    v_add_u32 v{T+3}, s{A_T0}, v{T}
    v_mul_u32_u24 v{T+4}, 288, v{T+1}
    v_lshl_add_u32 v{T+4}, v{T+3}, 1, v{T+4}
    v_cmp_lt_u32 vcc, 17, v{T+3}
    v_mov_b32 v{T+5}, 0x80000000
    v_cndmask_b32 v{T+4}, v{T+4}, v{T+5}, vcc
    """)
    def merge(k):
        a.wv(f"g{k}")
        for j in range(4): a(f"v_lshl_or_b32 v{GW + 4*k + j}, v{ACC + 8*(k % 6) + 2*j + 1}, 16, v{ACC + 8*(k % 6) + 2*j}")
    for k in range(18):
        if k >= 5: merge(k - 5)
        a(f"s_movk_i32 s{A_T0}, {32*36*k}")
        for e in range(8):
            a.vm(f"buffer_load_ushort v{ACC + 8*(k % 6) + e}, v{T+4}, s[{A_WS}:{A_WS+3}], s{A_T0} offen offset:{36*e}", f"g{k}")
    for k in range(13, 18): merge(k)
    a(f"v_mov_b64 {v(ACC,2)}, 0\nv_mov_b64 {v(ACC+2,2)}, 0\ns_lshl_b32 s{A_T0}, s{S_W}, 13\ns_add_u32 s{A_T0}, s{A_T0}, {LQ}\nv_add_u32 v{T+5}, s{A_T0}, v{L16}")
    for i in range(8): a(f"ds_write_b128 v{T+5}, {v(ACC,4)} offset:{i*1024}")
    a.wv0()
    a(f"s_cmp_ge_u32 s{S_W}, 2\ns_cbranch_scc1 L{tag}_vp")
    for k in range(18): m32(a, ACC, v(GW + 4 * k, 4), v(XF + 4 * k, 4), "0" if k == 0 else v(ACC, 4))
    a(f"""
    s_cmp_eq_u32 s{S_W}, 1
    s_cselect_b64 vcc, s[{A_G0}:{A_G0+1}], 0
    v_cndmask_b32 v{ACC+2}, v{ACC+2}, 1.0, vcc
    s_lshl_b32 s{A_T0}, s{A_TASK}, 10
    s_lshl_b32 s{A_T1}, s{S_W}, 3
    s_add_u32 s{A_T0}, s{A_T0}, s{A_T1}
    s_add_u32 s{A_T0}, s{A_T0}, {AKF}
    s_branch L{tag}_kvs
    L{tag}_vp:
    """)
    for k in range(18): m32(a, ACC, v(XF + 4 * k, 4), v(GW + 4 * k, 4), "0" if k == 0 else v(ACC, 4))
    a(f"v_cmp_eq_u32 vcc, 18, v{T+3}")
    for r in range(4): a(f"v_cndmask_b32 v{ACC+r}, v{ACC+r}, 1.0, vcc")
    a(f"""
    s_lshr_b32 s{A_T0}, s{A_TASK}, 1
    s_lshl_b32 s{A_T0}, s{A_T0}, 11
    s_and_b32 s{A_T1}, s{A_TASK}, 1
    s_lshl_b32 s{A_T1}, s{A_T1}, 3
    s_add_u32 s{A_T0}, s{A_T0}, s{A_T1}
    s_and_b32 s{A_T1}, s{S_W}, 1
    s_lshl_b32 s{A_T1}, s{A_T1}, 10
    s_add_u32 s{A_T0}, s{A_T0}, s{A_T1}
    s_add_u32 s{A_T0}, s{A_T0}, {AVF}
    L{tag}_kvs:
    """)
    cvt(a, ACC, ACC, ACC + 1); cvt(a, ACC + 1, ACC + 2, ACC + 3)
    a(f"""
    buffer_store_dwordx2 {v(ACC,2)}, v{L16}, s[8:11], s{A_T0} offen sc1
    s_waitcnt vmcnt(0) lgkmcnt(0)
    s_barrier
    s_cmp_lg_u32 s{S_W}, 0
    s_cbranch_scc1 L{tag}_nosig
    v_mov_b32 v{T+5}, 0
    v_mov_b32 v{T+6}, 1
    s_mov_b64 exec, 1
    global_atomic_add v{T+5}, v{T+6}, s[{S_DBG}:{S_DBG+1}] offset:{D_AKV*4}
    s_mov_b64 exec, -1
    s_waitcnt vmcnt(0)
    L{tag}_nosig:
    v_bfe_u32 v{T+3}, v{LANE}, 2, 2
    v_lshl_add_u32 v{T+3}, v{T+1}, 3, v{T+3}
    s_movk_i32 s{A_T1}, 1152
    v_and_b32 v{T+4}, 3, v{LANE}
    v_lshlrev_b32 v{T+4}, 3, v{T+4}
    v_mad_u32_u24 v{TRA}, v{T+3}, s{A_T1}, v{T+4}
    s_mul_i32 s{A_T0}, s{S_W}, 288
    v_add_u32 v{TRA}, s{A_T0}, v{TRA}
    v_add_u32 v{TRA+1}, 65536, v{TRA}
    """)
    skinny(a, "aq", 8)
    cb = fbits((18 ** -0.5) * math.log2(math.e))
    a(f"""
    s_mul_i32 s{A_T0}, s{S_W}, 144
    v_lshl_add_u32 v{T+2}, v{T+1}, 2, s{A_T0}
    v_lshlrev_b32 v{T+3}, 4, v{T}
    v_add_u32 v{T+3}, {LQ}, v{T+3}
    s_mov_b32 s{A_T1}, {cb}
    s_movk_i32 s{A_T2}, 3641
    """)
    for t in range(9):
        for r in range(4):
            x = ACC + 4 * t + r
            a(f"""
            v_add_u32 v{T+4}, {16*t + r}, v{T+2}
            v_mul_u32_u24 v{T+5}, s{A_T2}, v{T+4}
            v_lshrrev_b32 v{T+5}, 16, v{T+5}
            v_mul_u32_u24 v{T+6}, 18, v{T+5}
            v_sub_u32 v{T+4}, v{T+4}, v{T+6}
            v_lshl_add_u32 v{T+5}, v{T+5}, 10, v{T+3}
            v_bfe_u32 v{T+6}, v{T+4}, 2, 2
            v_lshl_add_u32 v{T+5}, v{T+6}, 8, v{T+5}
            v_and_b32 v{T+6}, 3, v{T+4}
            v_lshl_add_u32 v{T+5}, v{T+6}, 1, v{T+5}
            v_lshrrev_b32 v{T+4}, 4, v{T+4}
            v_lshl_add_u32 v{T+5}, v{T+4}, 3, v{T+5}
            v_mul_f32 v{x}, s{A_T1}, v{x}
            v_cvt_pk_bf16_f32 v{x}, v{x}, v{x}
            ds_write_b16 v{T+5}, v{x}
            """)
    a(f"v_mov_b32 v{T+5}, 0")
    a.label(f"L{tag}_kvw")
    a(f"""
    global_load_dword v{T+6}, v{T+5}, s[{S_DBG}:{S_DBG+1}] offset:{D_AKV*4} sc1
    s_add_u32 s{A_SPIN}, s{A_SPIN}, 1
    s_cmp_gt_u32 s{A_SPIN}, 2000000
    s_cbranch_scc1 {Lend}
    s_waitcnt vmcnt(0)
    v_cmp_gt_u32 vcc, 128, v{T+6}
    s_cbranch_vccz L{tag}_kvk
    s_sleep 8
    s_branch L{tag}_kvw
    L{tag}_kvk:
    s_lshl_b32 s{A_T0}, s{S_W}, 15
    s_add_u32 s{A_T1}, s{A_T0}, {AVF}
    s_add_u32 s{A_T0}, s{A_T0}, {AKF}
    """)
    for m, sr in ((0, A_T0), (1, A_T1)):
        for i in range(32):
            a(f"buffer_load_dwordx4 {ag(128*m + 4*i, 4)}, v{L16}, s[8:11], s{sr} offen offset:{(i & 3)*1024} sc1")
            if i & 3 == 3: a(f"s_add_u32 s{sr}, s{sr}, 4096")
        if m == 0: a("s_waitcnt vmcnt(16)")
    QA_, PA_, RA_, OA_ = 12, 13, 14, 15
    a(f"""
    v_add_u32 v{QA_}, {LQ}, v{L16}
    s_lshl_b32 s{A_T0}, s{S_W}, 11
    v_add_u32 v{PA_}, s{A_T0}, v{L16}
    s_lshl_b32 s{A_T0}, s{S_W}, 13
    v_add_u32 v{RA_}, s{A_T0}, v{L16}
    s_movk_i32 s{A_T1}, {OP}
    v_lshlrev_b32 v{T+2}, 3, v{T+1}
    v_mad_u32_u24 v{OA_}, v{T}, s{A_T1}, v{T+2}
    s_mul_i32 s{A_T0}, s{S_W}, 36
    s_add_u32 s{A_T0}, s{A_T0}, {LO}
    v_add_u32 v{OA_}, s{A_T0}, v{OA_}
    s_mov_b32 s{A_HEAD}, 0
    s_waitcnt vmcnt(0) lgkmcnt(0)
    s_barrier
    """)
    Q, O0, O1, MX, PQ = 16, 20, 24, 28, 32
    SD = 40
    a.label(f"L{tag}_grp")
    a(f"s_mov_b32 s{A_K}, 0")
    a.label(f"L{tag}_head")
    a(f"ds_read_b128 {v(Q,4)}, v{QA_}\nv_add_u32 v{QA_}, 1024, v{QA_}\ns_waitcnt lgkmcnt(0)")
    def kf(j): return ag(4 * j, 4)
    def vf(b, ft): return ag(128 + 8 * b + 4 * ft, 4)
    LAG = 3
    for j in range(32 + LAG):
        if j < 32: m32(a, SD + 4 * (j % 8), kf(j), v(Q, 4))
        if j >= LAG:
            d = SD + 4 * ((j - LAG) % 8); mx = MX + ((j - LAG) & 1)
            if j - LAG < 2: a(f"v_max3_f32 v{mx}, v{d}, v{d+1}, v{d+2}\nv_max_f32 v{mx}, v{mx}, v{d+3}")
            else: a(f"v_max3_f32 v{mx}, v{mx}, v{d}, v{d+1}\nv_max3_f32 v{mx}, v{mx}, v{d+2}, v{d+3}")
    a(f"""
    v_max_f32 v{MX}, v{MX}, v{MX+1}
    v_mov_b32 v{MX+1}, v{MX}
    v_permlane16_swap_b32 v{MX}, v{MX+1}
    v_max_f32 v{MX}, v{MX}, v{MX+1}
    v_mov_b32 v{MX+1}, v{MX}
    v_permlane32_swap_b32 v{MX}, v{MX+1}
    v_max_f32 v{MX}, v{MX}, v{MX+1}
    v_cvt_pk_bf16_f32 v{MX}, -v{MX}, 0
    v_cndmask_b32 v{Q+3}, 0, v{MX}, s[{A_G0}:{A_G0+1}]
    v_lshlrev_b32 v{MX}, 16, v{MX}
    """)
    def S(b):
        for i in range(2): m32(a, SD + 8 * (b % 4) + 4 * i, kf(2 * b + i), v(Q, 4))
    S(0); S(1)
    for b in range(16):
        d = SD + 8 * (b % 4); p = PQ + 4 * (b & 1)
        seq = []
        if b + 2 < 16: seq += [lambda i=i: m32(a, SD + 8 * ((b + 2) % 4) + 4 * i, kf(2 * (b + 2) + i), v(Q, 4)) for i in range(2)]
        if b > 0:
            pp = PQ + 4 * ((b - 1) & 1)
            seq += [lambda ft=ft: m32(a, (O0, O1)[ft], vf(b - 1, ft), v(pp, 4), "0" if b == 1 else v((O0, O1)[ft], 4)) for ft in range(2)]
        for e in range(8):
            if e % 2 == 0 and seq: seq.pop(0)()
            a(f"v_exp_f32 v{d+e}, v{d+e}")
            if e % 2 == 1 and e > 1: cvt(a, p + (e >> 1) - 1, d + e - 3, d + e - 2)
        cvt(a, p + 3, d + 6, d + 7)
    for ft in range(2): m32(a, (O0, O1)[ft], vf(15, ft), v(PQ + 4, 4), v((O0, O1)[ft], 4))
    a(f"""
    v_mov_b32 v{O1+3}, v{MX}
    ds_write_b128 v{PA_}, {v(O0,4)}
    ds_write_b128 v{PA_}, {v(O1,4)} offset:1024
    v_add_u32 v{PA_}, 8192, v{PA_}
    s_add_u32 s{A_K}, s{A_K}, 1
    s_cmp_lt_u32 s{A_K}, 4
    s_cbranch_scc1 L{tag}_head
    s_waitcnt lgkmcnt(0)
    s_barrier
    v_and_b32 v{T+2}, 0xfffffcff, v{RA_}
    """)
    PO, PZ = 40, 56
    for i in range(4):
        a(f"ds_read_b128 {v(PO+4*i,4)}, v{RA_} offset:{i*2048}\nds_read_b128 {v(PZ+4*i,4)}, v{T+2} offset:{i*2048 + 1024}")
    a(f"""
    s_waitcnt lgkmcnt(0)
    v_min3_f32 v{MX}, v{PZ+3}, v{PZ+7}, v{PZ+11}
    v_min_f32 v{MX}, v{MX}, v{PZ+15}
    """)
    for i in range(4): a(f"v_sub_f32 v{PZ+4*i+3}, v{MX}, v{PZ+4*i+3}\nv_exp_f32 v{PZ+4*i+3}, v{PZ+4*i+3}")
    for r in range(4): a(f"v_mul_f32 v{PO+r}, v{PO+r}, v{PZ+3}")
    for r in range(3): a(f"v_mul_f32 v{PZ+r}, v{PZ+r}, v{PZ+3}")
    for i in range(1, 4):
        for r in range(4): a(f"v_fmac_f32 v{PO+r}, v{PO+4*i+r}, v{PZ+4*i+3}")
        for r in range(3): a(f"v_fmac_f32 v{PZ+r}, v{PZ+4*i+r}, v{PZ+4*i+3}")
    a(f"v_rcp_f32 v{PZ+2}, v{PZ+2}")
    for r in range(4): a(f"v_mul_f32 v{PO+r}, v{PO+r}, v{PZ+2}")
    for r in range(2): a(f"v_mul_f32 v{PZ+r}, v{PZ+r}, v{PZ+2}")
    cvt(a, PO, PO, PO + 1); cvt(a, PO + 1, PO + 2, PO + 3); cvt(a, PZ, PZ, PZ + 1)
    a(f"""
    ds_write_b32 v{OA_}, v{PO}
    ds_write_b32 v{OA_}, v{PO+1} offset:4
    s_mov_b64 exec, s[{A_G0}:{A_G0+1}]
    ds_write_b32 v{OA_}, v{PZ} offset:32
    s_mov_b64 exec, -1
    v_add_u32 v{OA_}, 144, v{OA_}
    v_xor_b32 v{RA_}, 32768, v{RA_}
    v_and_b32 v{PA_}, 65535, v{PA_}
    s_add_u32 s{A_HEAD}, s{A_HEAD}, 4
    s_cmp_lt_u32 s{A_HEAD}, 32
    s_cbranch_scc1 L{tag}_grp
    s_waitcnt lgkmcnt(0)
    s_barrier
    s_movk_i32 s{A_T1}, {OP}
    v_lshlrev_b32 v{T+2}, 4, v{T+1}
    v_mad_u32_u24 v{T+2}, v{T}, s{A_T1}, v{T+2}
    v_add_u32 v{T+2}, {LO}, v{T+2}
    """)
    for k in range(18): a(f"ds_read_b128 {v(XF+4*k,4)}, v{T+2} offset:{64*k}")
    a("s_waitcnt lgkmcnt(0)")
    skinny(a, "ao", 32)
    a(f"""
    s_movk_i32 s{A_T1}, 2304
    v_lshlrev_b32 v{T+2}, 3, v{T+1}
    v_mad_u32_u24 v{T+2}, v{T}, s{A_T1}, v{T+2}
    s_mul_i32 s{A_T0}, s{A_TASK}, {16*2304}
    s_mul_i32 s{A_T1}, s{S_W}, 288
    s_add_u32 s{A_T0}, s{A_T0}, s{A_T1}
    """)
    for t in range(9):
        d = ACC + 4 * t
        cvt(a, d, d, d + 1); cvt(a, d + 1, d + 2, d + 3)
        a(f"buffer_store_dwordx2 {v(d,2)}, v{T+2}, s[{A_OS}:{A_OS+3}], s{A_T0} offen offset:{32*t}")
    a("s_waitcnt vmcnt(0)")
```

```python
from asmlib import *
from layout import *
import math, struct

def fbits(x): return struct.unpack("<I", struct.pack("<f", x))[0]

L16, IDX, TSEL, AW, PFD, MEMA, SWA = 0, 1, 2, 4, 5, 6, 7
KX0, KX1 = 8, 12
V0, V1 = 16, 22
QA, QB, KA, KB, VA, VB, R0, R1, R2, W0, W1 = 28, 32, 36, 40, 44, 48, 52, 56, 60, 64, 72
WREG0 = 80
LW = 0
LMEM = 147456
LSX = LMEM + 8192
LST = LSX + 4096
assert LST + 4096 == 163840
S_H, S_W = 20, 21
S_T0, S_T1, S_T2 = 22, 23, 24
S_STEP = 25
S_AST, S_AST2, S_AST1 = 26, 27, 28
S_RLD = 29
S_RST, S_BCL = 33, 34
S_BP = 35
S_KV, S_KV2, S_PUB = 38, 39, 40
S_RHO = 41
S_C = 42
S_HI8 = 44
S_SPIN = 46
S_BSL = 47
S_ONE = 48
S_DBG = 100
S_BC2 = 52
S_HST = 53
S_ZLO, S_ZHI = 54, 55
S_TM = 56
S_9216 = 77
S_ASL = 78
S_BA = 79
S_BR = 7
S_TAG = 76
S_ACLX = 76
S_MK = 12

HALF_RES = [("K", p) for p in range(9)] + [("V", 8), ("V", 7), ("O", (2, 1))]
RES_HALF = {x: 1 for x in HALF_RES}
FULL_RES = [("O", (0, 0)), ("O", (1, 1)), ("O", (3, 1))]

def chunk_of(w, p):
    e = [c for c in range(4) if c != w]
    return ([w] + e + [w + 4, 8] + [c + 4 for c in e])[p]

class WMap:
    def __init__(self):
        units = [(m, u) for m in "QKV" for u in range(9)] + [("O", (p, u)) for p in range(4) for u in range(2)] + [("S", 0)]
        full = [x for x in units if x not in HALF_RES and x not in FULL_RES]
        self.order = full + HALF_RES + FULL_RES
        self.loc = {}; self.lds = {}
        n = 0
        for x in self.order:
            for half in range(2):
                if x in FULL_RES: self.lds[(x, half)] = (6 + FULL_RES.index(x)) * 4096 + half * 2048
                elif x in HALF_RES and half == RES_HALF[x]: self.lds[(x, half)] = HALF_RES.index(x) * 2048
                else:
                    self.loc[(x, half)] = v(WREG0 + 8 * n, 8) if n < 22 else ag(8 * (n - 22), 8)
                    n += 1
        assert n == 54
        N = len(self.order); self.raw = [None] * N; self.issue_at = [None] * N
        busy = {}
        def dead_from(slot):
            if slot == 9: return 99
            if slot >= 6: return self.order.index(FULL_RES[slot - 6])
            return self.order.index(HALF_RES[2 * slot])
        nxt = 0
        for c in range(N):
            while nxt < N and nxt < c + 9:
                x = self.order[nxt]
                if x in FULL_RES: cand = [6 + FULL_RES.index(x)]
                else: cand = [s_ for s_ in range(10) if dead_from(s_) > nxt or (dead_from(s_) == nxt and s_ < 6)]
                cand = [s_ for s_ in cand if s_ not in busy]
                if not cand: break
                s_ = min(cand, key=dead_from)
                busy[s_] = nxt; self.raw[nxt] = s_; self.issue_at[nxt] = c; nxt += 1
            assert self.raw[c] is not None
            del busy[self.raw[c]]
    def reg(self, unit, half): return self.loc[(unit, half)]
    def regpair(self, unit, half, jj):
        t = self.loc[(unit, half)]; p = t[0]; b = int(t[2:t.index(":")])
        return f"{p}[{b+2*jj}:{b+2*jj+1}]"

WM = WMap()

def smf(a, d, A, B): a(f"v_smfmac_f32_16x16x64_bf16 {v(d,4)}, {v(A,4)}, {B}, {v(IDX)}")
def zero(a, q): a(f"v_mov_b64 {v(q,2)}, 0\nv_mov_b64 {v(q+2,2)}, 0")
def cvt(a, d, x, y): a(f"v_cvt_pk_bf16_f32 v{d}, v{x}, v{y}")
def loadW(a, unit, half, dst, tag):
    off = WM.lds[(unit, half)]
    a.ds(f"ds_read_b128 {v(dst,4)}, v{AW} offset:{off}", tag)
    a.ds(f"ds_read_b128 {v(dst+4,4)}, v{AW} offset:{off+1024}", tag)
NST = 9
def stamp(a, P, i):
    if P.get("stamp") and (i in P.get("only", range(8))):
        if "only" in P and len(P["only"]) == 2: i = list(P["only"]).index(i)
        a(f"{'s_memrealtime' if P['stamp'] == 2 else 's_memtime'} s[{S_TM+2*i}:{S_TM+2*i+1}]")

def prologue(a, w, P):
    T = 28; LANE = 79
    DQ, DO, DS_ = 78, 77, 76
    TQ, TV, TO, TS = 72, 70, 68, 66
    base = LW + w * 36864
    misc = LMEM + w * 4096
    GB, RR, CC = T + 2, T + 3, T + 4
    a(f"""
    v_lshrrev_b32 v{LANE}, 4, v{L16}
    v_lshrrev_b32 v{T}, 2, v{LANE}
    v_and_b32 v{T+1}, 3, v{LANE}
    v_lshlrev_b32 v{T+1}, 4, v{T+1}
    v_lshl_add_u32 v{DQ}, v{T}, 13, v{T+1}
    s_lshl_b32 s{S_T0}, s{S_H}, 8
    s_add_u32 s{S_T0}, s{S_T0}, {w*64}
    v_add_u32 v{DQ}, s{S_T0}, v{DQ}
    s_movk_i32 s{S_T1}, 1152
    v_mad_u32_u24 v{DO}, v{T}, s{S_T1}, v{T+1}
    s_mul_i32 s{S_T0}, s{S_H}, 147456
    v_add_u32 v{DO}, s{S_T0}, v{DO}
    v_lshrrev_b32 v{T}, 1, v{LANE}
    v_and_b32 v{T+1}, 1, v{LANE}
    v_lshlrev_b32 v{T+1}, 4, v{T+1}
    v_mad_u32_u24 v{DS_}, v{T}, s{S_T1}, v{T+1}
    v_add_u32 v{DS_}, s{S_T0}, v{DS_}
    v_lshrrev_b32 v{GB}, 4, v{LANE}
    v_bfe_u32 v{RR}, v{LANE}, 2, 2
    v_and_b32 v{CC}, 3, v{LANE}
    v_lshl_add_u32 v{T}, v{GB}, 3, v{RR}
    v_lshlrev_b32 v{T}, 6, v{T}
    v_add_u32 v{T}, {base}, v{T}
    v_lshl_add_u32 v{TV}, v{CC}, 3, v{T}
    v_lshrrev_b32 v{T+1}, 1, v{CC}
    v_lshl_add_u32 v{T}, v{T+1}, 5, v{T}
    v_and_b32 v{T+1}, 1, v{CC}
    v_lshl_add_u32 v{TQ}, v{T+1}, 3, v{T}
    v_and_b32 v{T}, 1, v{GB}
    v_lshlrev_b32 v{T}, 4, v{T}
    v_lshrrev_b32 v{T+1}, 1, v{GB}
    v_lshl_add_u32 v{T}, v{T+1}, 2, v{T}
    v_lshrrev_b32 v{T+1}, 1, v{RR}
    v_add_u32 v{T}, v{T}, v{T+1}
    v_and_b32 v{T+1}, 1, v{RR}
    v_lshlrev_b32 v{T+5}, 3, v{CC}
    v_add_u32 v{T+5}, {base}, v{T+5}
    v_lshl_add_u32 v{TO}, v{T}, 6, v{T+5}
    v_lshl_add_u32 v{TO}, v{T+1}, 5, v{TO}
    v_lshl_add_u32 v{TS}, v{T}, 5, v{T+5}
    v_lshl_add_u32 v{TS}, v{T+1}, 10, v{TS}
    v_add_u32 v{AW}, {base}, v{L16}
    """)
    for t in (TQ, TV, TO, TS): a(f"v_add_u32 v{t+1}, {misc - base}, v{t}")
    ptr = {"Q": 56, "K": 64, "V": 72, "O": 80}
    srd = {"Q": 60, "K": 64, "V": 68, "O": 72, "S": 72}
    for m in "QKVO": a(f"s_load_dwordx2 s[{srd[m]}:{srd[m]+1}], s[0:1], {ptr[m]}")
    a("s_waitcnt lgkmcnt(0)")
    for m in "QKVO": a(f"s_mov_b32 s{srd[m]+2}, 4718592\ns_mov_b32 s{srd[m]+3}, 0x20000")
    cb = fbits((128 ** -0.5) * math.log2(math.e))
    a(f"s_mov_b32 s{S_C}, {cb}\ns_mov_b32 s{S_C+1}, {cb}")
    def issue(n):
        m, x = WM.order[n]; rs = WM.raw[n]
        for i in range(4):
            if m in "QKV": so = (64 * chunk_of(w, x) + 16 * i) * 8192; vo = DQ
            elif m == "O": so = (64 * x[1] + 16 * i) * 1152 + (8 * x[0] + 2 * w) * 32; vo = DO
            else: so = (32 * i) * 1152 + (32 + w) * 32; vo = DS_
            a(f"s_mov_b32 m0, {(misc if rs == 9 else base + rs * 4096) + i * 1024}")
            a(f"s_mov_b32 s{S_T0}, {so}")
            a.vm(f"buffer_load_dwordx4 v{vo}, s[{srd[m]}:{srd[m]+3}], s{S_T0} offen lds", f"u{n}")
    def consume(n):
        unit = WM.order[n]; m, x = unit; rs = WM.raw[n]
        sb = 0 if rs == 9 else rs * 4096; am = 1 if rs == 9 else 0
        a.wv(f"u{n}")
        for half in range(2):
            for jj in range(4):
                if m in "QK": ad, off = TQ, sb + (32 * (jj >> 1) + 4 * (jj & 1)) * 64 + 16 * half
                elif m == "V": ad, off = TV, sb + (32 * (jj >> 1) + 4 * (jj & 1)) * 64 + 32 * half
                elif m == "O": ad, off = TO, sb + half * 2048 + (8 * (jj >> 1) + 2 * (jj & 1)) * 64
                else: ad, off = TS, sb + half * 2048 + (8 * (jj >> 1) + 2 * (jj & 1)) * 32
                dst = v(40 + half * 8 + 2 * jj, 2) if (unit, half) in WM.lds else WM.regpair(unit, half, jj)
                a.ds(f"ds_read_b64_tr_b16 {dst}, v{ad+am} offset:{off}", "tr")
        a.wl0()
        if m == "Q":
            for half in range(2):
                t = WM.reg(unit, half); assert t[0] == "v"; b0 = int(t[2:t.index(":")])
                for j in range(8):
                    a(f"v_lshlrev_b32 v40, 16, v{b0+j}\nv_and_b32 v41, 0xffff0000, v{b0+j}\nv_pk_mul_f32 v[40:41], v[40:41], s[{S_C}:{S_C+1}]\nv_cvt_pk_bf16_f32 v{b0+j}, v40, v41")
        wrote = False
        for half in range(2):
            if (unit, half) in WM.lds:
                for q in range(2):
                    a.ds(f"ds_write_b128 v{AW}, {v(40+8*half+4*q,4)} offset:{WM.lds[(unit,half)] + q*1024}", "tw")
                wrote = True
        if wrote: a.wl0()
    for c in range(36):
        for n in range(36):
            if WM.issue_at[n] == c: issue(n)
        consume(c)
    a("s_barrier")
    a(f"""
    s_load_dwordx2 s[60:61], s[0:1], 48
    s_waitcnt lgkmcnt(0)
    s_mov_b32 s62, 9216
    s_mov_b32 s63, 0x20000
    v_and_b32 v{T}, 7, v{LANE}
    s_movk_i32 s{S_T1}, 1152
    v_lshrrev_b32 v{T+1}, 4, v{LANE}
    v_lshlrev_b32 v{T+1}, 5, v{T+1}
    v_mad_u32_u24 v{T}, v{T}, s{S_T1}, v{T+1}
    v_bfe_u32 v{T+1}, v{LANE}, 3, 1
    v_mov_b32 v{T+2}, 0x05040100
    v_mov_b32 v{T+3}, 0x07060302
    v_cmp_eq_u32 vcc, 1, v{T+1}
    v_cndmask_b32 v{T+2}, v{T+2}, v{T+3}, vcc
    """)
    for p, q in ((0, R0), (5, R1), (4, R2)):
        c = chunk_of(w, p)
        a.vm(f"buffer_load_dwordx4 v[64:67], v{T}, s[60:63], 0 offen offset:{c*128}", "m")
        a.vm(f"buffer_load_dwordx4 v[68:71], v{T}, s[60:63], 0 offen offset:{c*128+16}", "m")
        a.wv0()
        for j in range(4): a(f"v_perm_b32 v{q+j}, v{65+2*j}, v{64+2*j}, v{T+2}")
    Q1, Q2, Q3, Q4 = 36, 40, 44, 48
    a(f"""
    v_mov_b32 v{IDX}, 0x8888
    v_mov_b32 v{T}, 0xdddd
    v_cndmask_b32 v{IDX}, v{IDX}, v{T}, vcc
    v_and_b32 v{T}, 7, v{LANE}
    v_bfe_u32 v{T+1}, v{LANE}, 4, 1
    v_lshlrev_b32 v{T+1}, 2, v{T+1}
    v_sub_u32 v{T}, v{T}, v{T+1}
    v_and_b32 v{T+1}, 1, v{T}
    v_lshlrev_b32 v{T+1}, 4, v{T+1}
    v_mov_b32 v{T+2}, 0x3f80
    v_lshlrev_b32 v{T+2}, v{T+1}, v{T+2}
    v_ashrrev_i32 v{T}, 1, v{T}
    v_cmp_eq_u32 vcc, 0, v{T}
    v_cndmask_b32 v{TSEL}, 0, v{T+2}, vcc
    v_cmp_eq_u32 vcc, 1, v{T}
    v_cndmask_b32 v{TSEL+1}, 0, v{T+2}, vcc
    v_add_u32 v{MEMA}, {LMEM}, v{L16}
    v_bfe_u32 v{T}, v{L16}, 8, 1
    v_and_b32 v{T+1}, 0x70, v{L16}
    v_lshrrev_b32 v{SWA}, 5, v{L16}
    v_and_b32 v{SWA}, 0x18, v{SWA}
    v_lshl_add_u32 v{SWA}, v{T+1}, 1, v{SWA}
    v_add_u32 v{SWA}, {LSX + w*1040}, v{SWA}
    s_movk_i32 s{S_T1}, 9216
    v_lshrrev_b32 v{Q1}, 7, v{L16}
    v_mad_u32_u24 v{Q1}, v{Q1}, s{S_T1}, v{T+1}
    v_lshl_or_b32 v{Q1+1}, v{T}, 3, v{T+1}
    v_lshrrev_b32 v{T+2}, 9, v{L16}
    v_lshl_or_b32 v{Q1+1}, v{T+2}, 2, v{Q1+1}
    v_bfe_u32 v{T+3}, v{L16}, 7, 1
    v_lshl_or_b32 v{Q1+1}, v{T+3}, 31, v{Q1+1}
    v_and_b32 v{Q1+2}, 0x33f, v{L16}
    v_lshl_or_b32 v{Q1+2}, v{T+3}, 6, v{Q1+2}
    v_bfe_u32 v{T+4}, v{L16}, 6, 1
    v_lshl_or_b32 v{Q1+2}, v{T+4}, 7, v{Q1+2}
    v_bfe_u32 v{Q1+3}, v{L16}, 1, 8
    v_lshl_or_b32 v{Q1+3}, v{T+2}, 2, v{Q1+3}
    v_and_b32 v{T}, 16, v{L16}
    v_mov_b32 v{T+2}, 0x3f80
    v_lshlrev_b32 v{T+2}, v{T}, v{T+2}
    v_bfe_u32 v{T}, v{L16}, 5, 2
    """)
    a(f"v_bfe_u32 v{T}, v{L16}, 5, 3")
    for j in range(4): a(f"v_cmp_eq_u32 vcc, {j}, v{T}\nv_cndmask_b32 v{Q2+j}, 0, v{T+2}, vcc")
    for j in range(4): a(f"v_cmp_eq_u32 vcc, {j+4}, v{T}\nv_cndmask_b32 v{Q4+j}, 0, v{T+2}, vcc")
    a(f"""
    v_lshrrev_b32 v{T}, 8, v{L16}
    v_lshl_or_b32 v{T}, v{T}, 7, v{T+1}
    v_add_u32 v{Q3+1}, {LMEM + 4096}, v{T}
    v_lshl_add_u32 v{Q3}, v{T+3}, 3, v{Q3+1}
    v_lshl_add_u32 v{Q3+2}, v{T+3}, 9, v{Q3+1}
    v_lshrrev_b32 v{Q3+3}, 1, v{L16}
    """)
    if w == 0:
        for i, q in ((1, Q2), (2, Q3), (3, Q4)):
            a.ds(f"ds_write_b128 v{MEMA}, {v(q,4)} offset:{LST - LMEM + i*1024}", "st")
        a.wl0()
    a(f"""
    s_mov_b32 s{S_HI8}, 0xff00ff00
    s_mov_b32 s{S_HI8+1}, 0xff00ff00
    s_mov_b32 s{S_ONE}, 0x3e803e80
    s_mov_b32 s{S_ONE+1}, 0x3e803e80
    s_mov_b32 s{S_ONE+2}, 0x3f803f80
    s_mov_b32 s{S_ONE+3}, 0x3f803f80
    s_mov_b32 s{S_ZLO}, {fbits(2.0**-60)}
    s_mov_b32 s{S_ZHI}, {fbits(2.0**60)}
    s_mov_b32 s{S_STEP}, 0
    s_mov_b32 s{S_SPIN}, 0
    s_mov_b32 s{S_BSL}, 0
    s_mul_i32 s{S_KV}, s{S_H}, 8192
    s_add_u32 s{S_KV}, s{S_KV}, {KX + w*2048}
    s_add_u32 s{S_KV2}, s{S_KV}, {VX - KX}
    s_add_u32 s{S_PUB}, s{S_KV}, {KVM - KX}
    s_mul_i32 s{S_BA}, s{S_H}, 9216
    s_add_u32 s{S_BA}, s{S_BA}, {MBA}
    s_lshl_b32 s{S_T1}, s{S_H}, 7
    s_add_u32 s{S_BR}, s{S_T1}, {MBA + w*4096}
    s_add_u32 s{S_RHO}, s{S_T1}, {MBB + w*4096}
    s_mov_b32 s{S_ASL}, {MBA_SLOT}
    s_movk_i32 s{S_9216}, 9216
    """)
    if w == 2:
        a(f"s_cmp_ge_u32 s{S_H}, 8\ns_cselect_b32 s{S_T0}, 0x80000000, 0\ns_or_b32 s{S_RHO}, s{S_RHO}, s{S_T0}")
    a(f"s_add_u32 s{S_BCL}, s{S_RHO}, {3*MBB_SLOT}\ns_add_u32 s{S_BC2}, s{S_RHO}, {2*MBB_SLOT}")
    a(f"s_lshl_b32 s{S_HST}, s{S_H}, 10\ns_add_u32 s{S_HST}, s{S_HST}, {HIST}")

def loop(a, w, P, sc, Lend):
    tag = f"c{w}{'s' if sc else 'f'}"
    psc = P.get("psc", "sc1")
    Ltop, Lfirst, Lout = f"L{tag}_top", f"L{tag}_first", f"L{tag}_out"
    BP, TMP = V0, V0 + 1
    sq_, vq_ = [], []
    def gap(*items):
        n0 = len(a.lines)
        for it in items:
            if it is None: continue
            it() if callable(it) else a(it)
        new = a.lines[n0:]
        room = (2 if any(x.startswith(("ds_", "buffer_store")) for x in new) else 3) - len(new)
        nv = 1 if (vq_ and room > 0) else 0
        while room - nv > 0 and sq_ and (len(a.lines) - n0) < 2 + (0 if nv else 1):
            a(sq_.pop(0)); room -= 1
        if nv: a(vq_.pop(0))
    def sm(d, A, B, *items):
        smf(a, d, A, B); gap(*items)
    def spin(k=0):
        if P.get("cnt"): a(f"s_add_u32 s{83+k}, s{83+k}, 1")
        a(f"s_add_u32 s{S_SPIN}, s{S_SPIN}, 1\ns_cmp_gt_u32 s{S_SPIN}, 400000\ns_cbranch_scc1 {Lend}")
    def rdW(unit, half, dst, q, tg):
        return lambda: a.ds(f"ds_read_b128 {v(dst+4*q,4)}, v{AW} offset:{WM.lds[(unit,half)] + q*1024}", tg)
    def rdA(p, q): return lambda: a.ds(f"ds_read_b128 {v(q,4)}, v{MEMA} offset:{chunk_of(w,p)*1024}", f"A{p}")
    def wl(*t): return lambda: a.wl(*t)
    def vm(txt, tg): return lambda: a.vm(txt, tg)
    Q = lambda p, h: WM.reg(("Q", p), h)
    K = lambda p, h: WM.reg(("K", p), h)
    Vw = lambda p, h: WM.reg(("V", p), h)
    NEG = V0 + 2
    RL, RS = V1 + 2, V1 + 3
    FILL = f"v_mov_b32 v{PFD}, v{PFD}"
    def warm(n):
        for _ in range(n): a(FILL + "\ns_nop 2")
    def chk(q, q2=None):
        a(f"v_max3_u32 v{TMP}, v{q}, v{q+1}, v{q+2}")
        if q2 is not None: a(f"v_max3_u32 v{TMP}, v{TMP}, v{q2}, v{q2+1}\nv_max3_u32 v{TMP}, v{TMP}, v{q2+2}, v{q2+3}")
        a(f"v_max_u32 v{TMP}, v{TMP}, v{q+3}\nv_cmp_eq_u32 vcc, -1, v{TMP}")
    def bld(q, i): a(f"buffer_load_dwordx4 {v(q,4)}, v{BP}, s[8:11], s{S_BP+i} offen sc1")
    C8 = LST - LMEM
    n8 = 1 if w == 3 else 0
    def lofs(p): return C8 if chunk_of(w, p) == 8 else chunk_of(w, p) * 1024
    def rdA(p, q): return lambda: a.ds(f"ds_read_b128 {v(q,4)}, v{MEMA} offset:{lofs(p)}", f"A{p}")
    a(f"v_mov_b32 v{BP}, v38\nv_mov_b32 v{RS}, v37")
    for i, (c, q) in enumerate(((chunk_of(w, 0), R0), (8, R1), (chunk_of(w, 4), R2))):
        a(f"s_mov_b32 s{S_BP+i}, {MBB + c*1024}")
        a(f"buffer_store_dwordx4 {v(q,4)}, v{BP}, s[8:11], s{S_BP+i} offen {sc}")
    for q in (QA, QB, VA, VB): zero(a, q)
    a.wl0(); a.wv0()
    a(".filler " + FILL)
    Lb, Lgo = f"L{tag}_pb", f"L{tag}_go"
    def chkm(q, m):
        a(f"v_max3_u32 v{TMP}, v{q}, v{q+1}, v{q+2}\nv_max_u32 v{TMP}, v{TMP}, v{q+3}\nv_cmp_eq_u32 s[{m}:{m+1}], -1, v{TMP}")
    def masked(m, txt): a(f"s_or_b64 exec, s[{m}:{m+1}], 1\n{txt}")
    def btx(q, i): return f"buffer_load_dwordx4 {v(q,4)}, v{BP}, s[8:11], s{S_BP+i} offen sc1"
    a.label(Ltop)
    if w < 2: warm(P.get("d2e" if w == 0 else "d2", 0))
    stamp(a, P, 8)
    bld(R0, 0)
    loadW(a, ("K", 0), 1, W0, "w0"); loadW(a, ("K", 1), 1, W1, "w1")
    zero(a, KA); zero(a, KB)
    a(f"v_mov_b32 v{NEG}, -1")
    warm(P.get("wb1", 10))
    a(f"s_waitcnt vmcnt(0)")
    a.label(Lgo)
    a.vq = []; a.lq = ["w0", "w0", "w1", "w1"]
    stamp(a, P, 0)
    sq_ += [f"s_mov_b32 s{S_T1}, s{S_BC2}", f"s_mov_b32 s{S_BC2}, s{S_BCL}"]
    sq_ += [f"s_xor_b32 s{S_ASL}, s{S_ASL}, {MBA_SLOT}", f"s_bfe_i32 s{S_TAG}, s{S_STEP}, 0x10001"]
    sq_ += [f"s_add_u32 s{S_BCL}, s{S_RHO}, s{S_BSL}", f"s_add_u32 s{S_BSL}, s{S_BSL}, {MBB_SLOT}",
            f"s_and_b32 s{S_BSL}, s{S_BSL}, {4*MBB_SLOT-1}", f"s_movk_i32 s{S_T2}, 1040", f"s_add_u32 s{S_RST}, s{S_RHO}, s{S_BSL}",
            f"s_add_u32 s{S_BP}, s{S_BSL}, {MBB + chunk_of(w, 0)*1024}"]
    def kw(p, q): return rdW(("K", p), 1, (W0, W1)[p & 1], q, ("w0", "w1")[p & 1])
    L8 = V1 + 2 - 0
    keep = sq_[:]; sq_.clear()
    vq_ += [f"v_max3_u32 v{TMP}, v{R0}, v{R0+1}, v{R0+2}", f"v_max_u32 v{TMP}, v{TMP}, v{R0+3}", f"v_cmp_eq_u32 vcc, -1, v{TMP}"]
    sm(QA, R0, Q(0, 0), lambda: a.ds(f"ds_write_b128 v{MEMA}, {v(R0,4)} offset:{lofs(0)}", "mw"))
    sm(QB, R0, Q(0, 1), vm(btx(R2, 2), "late"), vm(btx(L8, 1), "late") if n8 else None)
    sm(KA, R0, K(0, 0), wl("w0", "w1")); sm(KB, R0, v(W0, 8))
    smf(a, VA, R0, Vw(0, 0))
    a(f"s_cbranch_vccnz {Lb}")
    sq_ += keep
    sm(VB, R0, Vw(0, 1))
    a.wl("mw"); a("s_barrier")
    stamp(a, P, 1)
    rdA(1, R1)(); rdA(2, KX0)()
    if w < 3: a.vm(f"buffer_store_dword v{NEG}, v{RS}, s[8:11], s{S_T1} offen {sc}", "clr")
    a.wl("A1")
    def qk(p, A, g0=(), g1=(), g2=(), g3=()):
        b, t = ((W0, "w0"), (W1, "w1"))[p & 1]
        sm(QA, A, Q(p, 0), *g0); sm(QB, A, Q(p, 1), *g1); sm(KA, A, K(p, 0), *g2, wl(t)); sm(KB, A, v(b, 8), *g3)
    Ll, Llok = f"L{tag}_lp", f"L{tag}_lok"
    late_v = [f"v_max3_u32 v{TMP}, v{R2}, v{R2+1}, v{R2+2}"]
    if n8: late_v += [f"v_max3_u32 v{TMP}, v{TMP}, v{L8}, v{L8+1}", f"v_max3_u32 v{TMP}, v{TMP}, v{L8+2}, v{L8+3}"]
    late_v += [f"v_max_u32 v{TMP}, v{TMP}, v{R2+3}", f"v_cmp_eq_u32 vcc, -1, v{TMP}"]
    def late_br():
        a(f"s_cbranch_vccnz {Ll}"); a.label(Llok)
    def late_wr(): a.ds(f"ds_write_b128 v{MEMA}, {v(R2,4)} offset:{lofs(4)}", "mw2")
    def late_wr8(): a.ds(f"ds_write_b128 v{MEMA}, {v(L8,4)} offset:{C8}", "mw2")
    kvstep = 0 if P.get("nokv") else 32 * 8192
    ldk0 = vm(f"buffer_load_dwordx4 {v(KX0,4)}, v{L16}, s[8:11], s{S_KV} offen sc1", "kx")
    ldk1 = vm(f"buffer_load_dwordx4 {v(KX1,4)}, v{L16}, s[8:11], s{S_KV} offen offset:1024 sc1", "kx")
    ldv0 = vm(f"buffer_load_dwordx4 {v(V0+2,4)}, v{L16}, s[8:11], s{S_KV2} offen sc1", "vx")
    ldv1 = vm(f"buffer_load_dwordx4 {v(V1+2,4)}, v{L16}, s[8:11], s{S_KV2} offen offset:1024 sc1", "vx")
    qk(1, R1, g0=(kw(2, 0),), g1=(kw(2, 1),), g2=(rdA(3, KX1),), g3=(kw(3, 0), wl("A2")))
    vq_ += [f"v_and_b32 v{PFD}, 0x1f0, v{L16}", f"v_lshlrev_b32 v{PFD}, 2, v{PFD}", f"v_lshrrev_b32 v{TMP}, 9, v{L16}"]
    qk(2, KX0, g0=(kw(3, 1),), g3=(kw(4, 0), wl("A3")))
    assert not vq_
    stamp(a, P, 10)
    a(f"v_lshl_or_b32 v{PFD}, v{TMP}, 24, v{PFD}")
    vq_ += late_v
    if n8: a.wv("late"); a(vq_.pop(0)); a(vq_.pop(0))
    qk(3, KX1, g0=(lambda: a.wv("late"),), g1=(), g2=(), g3=(kw(4, 1), ldk0))
    assert not vq_
    smf(a, VA, R1, Vw(1, 0))
    late_br()
    stamp(a, P, 11)
    sm(QA, R2, Q(4, 0), late_wr, late_wr8 if n8 else None); sm(QB, R2, Q(4, 1)); sm(KA, R2, K(4, 0), ldk1, wl("w0"))
    sm(KB, R2, v(W0, 8), kw(5, 0)); sm(VA, R2, Vw(4, 0), kw(5, 1))
    stamp(a, P, 20)
    a.wl("mw2")
    stamp(a, P, 21)
    a("s_barrier")
    stamp(a, P, 9)
    sq_ += [f"s_add_u32 s{S_KV}, s{S_KV}, {kvstep}", f"s_add_u32 s{S_BP+2}, s{S_BSL}, {MBB + chunk_of(w, 4)*1024}",
            f"s_add_u32 s{S_BP+1}, s{S_BSL}, {MBB + 8*1024}"]
    SRA, SRA3 = BP, TMP
    rdA(5, R0)()
    sm(VB, R2, Vw(4, 1), rdA(7, R2), ldv0); sm(VB, R1, Vw(1, 1), rdA(6, R1))
    a.wl("A5")
    vq_ += [f"v_and_b32 v{SRA}, 0x70, v{L16}", f"v_lshlrev_b32 v{SRA}, 1, v{SRA}", f"v_lshrrev_b32 v{SRA3}, 8, v{L16}",
            f"v_mad_u32_u24 v{SRA3}, v{SRA3}, s{S_T2}, v{SRA}", f"v_add_u32 v{SRA3}, {LSX}, v{SRA3}",
            f"v_and_b32 v{SRA}, 0x80, v{L16}", f"v_lshl_add_u32 v{SRA}, v{SRA}, 1, v{SRA3}"]
    sq_ += [f"s_add_u32 s{S_AST1}, s{S_BA}, s{S_ASL}", f"s_add_u32 s{S_AST}, s{S_AST1}, {2*w*256}", f"s_add_u32 s{S_AST2}, s{S_AST1}, {2*w*256 + 4096}",
            f"s_add_u32 s{S_AST1}, s{S_AST1}, {(32+w)*256}"]
    if w < 3:
        sq_ += [f"s_add_u32 s{S_RLD}, s{S_BR}, s{S_ASL}"] + [f"s_add_u32 s{S_RLD+i}, s{S_RLD}, {i*8*9216}" for i in (1, 2, 3)]
    pf = vm(f"buffer_load_dword v{PFD}, v{PFD}, s[8:11], s{S_KV} offen sc1", "pf") if not P.get("nopf") else None
    qk(5, R0, g0=(kw(6, 0),), g1=(kw(6, 1),), g2=(ldv1,), g3=(kw(7, 0),))
    sm(VA, R0, Vw(5, 0), kw(7, 1)); sm(VB, R0, Vw(5, 1), rdA(8, R0), wl("A6"))
    sq_ += [f"s_add_u32 s{S_KV2}, s{S_KV2}, {kvstep}"]
    qk(6, R1, g0=(pf,), g3=(kw(8, 0), wl("A7")))
    qk(7, R2, g0=(kw(8, 1),), g3=(rdW(("V", 7), 1, W1, 0, "w1"), wl("A8")))
    qk(8, R0, g0=(rdW(("V", 7), 1, W1, 1, "w1"),), g3=(rdW(("V", 8), 1, W0, 0, "w0"),))
    assert not sq_ and not vq_
    stamp(a, P, 2)
    def tm(d, A): a(f"v_mfma_f32_16x16x16_bf16 {v(d,4)}, {v(A,2)}, {v(TSEL,2)}, 0")
    def m32(d, A, B, C="0"): a(f"v_mfma_f32_16x16x32_bf16 {v(d,4)}, {v(A,4)}, {v(B,4)}, {C}")
    cvt(a, QA, QA, QA + 1); cvt(a, QA + 1, QA + 2, QA + 3); cvt(a, QA + 2, QB, QB + 1); cvt(a, QA + 3, QB + 2, QB + 3)
    cvt(a, KA, KA, KA + 1); cvt(a, KA + 1, KA + 2, KA + 3)
    tm(QB, QA); rdW(("V", 8), 1, W0, 1, "w0")()
    cvt(a, KA + 2, KB, KB + 1); cvt(a, KA + 3, KB + 2, KB + 3)
    tm(KB, QA + 2)
    a.wv("kx")
    tm(QA, KA)
    cvt(a, QB, QB, QB + 1); cvt(a, QB + 1, QB + 2, QB + 3)
    tm(R1, KA + 2)
    cvt(a, QB + 2, KB, KB + 1); cvt(a, QB + 3, KB + 2, KB + 3)
    m32(KB, KX0, QB); rdA(2, KX0)()
    cvt(a, QA, QA, QA + 1); cvt(a, QA + 1, QA + 2, QA + 3)
    m32(KA, KX1, QB); rdA(3, KX1)()
    cvt(a, QA + 2, R1, R1 + 1); cvt(a, QA + 3, R1 + 2, R1 + 3)
    m32(R1, QA, QB)
    if P.get("pub"):
        a.vm(f"buffer_store_dwordx4 {v(QA,4)}, v{L16}, s[8:11], s{S_PUB} offen {psc}", "pub")
    a.wl("w0", "w1")
    cvt(a, KB, KB, KB + 1); cvt(a, KB + 1, KB + 2, KB + 3); cvt(a, KA, KA, KA + 1); cvt(a, KA + 1, KA + 2, KA + 3)
    def sw(q, off): return lambda: a.ds(f"ds_write_b64 v{SWA}, {v(q,2)} offset:{off}", "sw")
    def stash(q, i, tg): return lambda: a.ds(f"ds_read_b128 {v(q,4)}, v{MEMA} offset:{LST - LMEM + i*1024}", tg)
    SLO, SHI = QA, QB
    U00 = ("O", (0, 0))
    sm(VA, R0, Vw(8, 0), sw(KB, 0), sw(KA, 256))
    cvt(a, R1, R1, R1 + 1); cvt(a, R1 + 1, R1 + 2, R1 + 3)
    sm(VB, R0, v(W0, 8), sw(R1, 512))
    sm(VB, R2, v(W1, 8), stash(SLO, 1, "sel"))
    sm(VA, R2, Vw(7, 0), rdA(6, R2), wl("A2", "A3"))
    sm(VA, KX1, Vw(3, 0), stash(SHI, 3, "sel"))
    sm(VB, KX1, Vw(3, 1), wl("sw"))
    a("s_barrier")
    stamp(a, P, 3)
    B1, B2, B3, X, M, ON = KX1, KB, KA, KX0, R1, KA
    Bq = VB
    E1, E2, F1, F2, ZD, AQ = QA, QB, VA, KX1, KB, R2
    SQ = V1 + 2
    a.ds(f"ds_read_b128 {v(B1,4)}, v{SRA}", "b1")
    sm(VA, KX0, Vw(2, 0), lambda: a.ds(f"ds_read_b128 {v(B2,4)}, v{SRA} offset:16", "b2"))
    sm(VB, KX0, Vw(2, 1), lambda: a.ds(f"ds_read_b128 {v(B3,4)}, v{SRA3} offset:512", "b3"), wl("A6"))
    vq_ += [f"v_mov_b64 {v(R0,2)}, 0"]
    sm(VA, R2, Vw(6, 0), rdW(U00, 0, W0, 0, "w0"))
    sm(VB, R2, Vw(6, 1), rdW(U00, 0, W0, 1, "w0"), wl("b1", "b2"))
    stamp(a, P, 15)
    m32(X, SLO, B1)
    rdW(U00, 1, W1, 0, "w1")()
    m32(X, SHI, B2, v(X, 4))
    a.wl("b3")
    cvt(a, V0, VA, VA + 1)
    m32(M, SLO, B3)
    cvt(a, V0 + 1, VA + 2, VA + 3); cvt(a, V1, VB, VB + 1)
    m32(M, SHI, B3, v(M, 4))
    rdW(U00, 1, W1, 1, "w1")()
    stamp(a, P, 12)
    for r in range(4): a(f"v_exp_f32 v{KX1+r}, v{X+r}")
    cvt(a, V1 + 1, VB + 2, VB + 3)
    cvt(a, Bq + 2, KX1, KX1 + 1); cvt(a, Bq + 3, KX1 + 2, KX1 + 3)
    a(f"v_exp_f32 v{KB}, v{M}")
    a.wv("vx")
    m32(E2, V0 + 4, Bq + 2)
    stash(AQ, 2, "aq")()
    a(f"v_exp_f32 v{KB+1}, v{M+1}")
    m32(F2, V1 + 4, Bq + 2)
    if P.get("pub"): a(f"s_cmp_eq_u32 s{S_STEP}, 63")
    for r in range(2, 4): a(f"v_exp_f32 v{KB+r}, v{M+r}")
    cvt(a, Bq, KB, KB + 1); cvt(a, Bq + 1, KB + 2, KB + 3)
    a(f"v_mov_b64 {v(ON,2)}, s[{S_ONE}:{S_ONE+1}]\nv_mov_b64 {v(ON+2,2)}, s[{S_ONE+2}:{S_ONE+3}]")
    stamp(a, P, 13)
    m32(E1, V0, Bq)
    if P.get("pub"): a.vm(f"buffer_store_dwordx2 {v(V0,2)}, v{L16}, s[8:11], s{S_PUB} offen offset:1024 {psc}", "pub")
    m32(ZD, ON, Bq)
    if P.get("pub"): a.vm(f"buffer_store_dwordx2 {v(V1,2)}, v{L16}, s[8:11], s{S_PUB} offen offset:1032 {psc}", "pub")
    if P.get("pub"): a(f"s_cbranch_scc1 {Lout}")
    m32(F1, V1, Bq)
    a.wl("aq")
    Lslow, Lcont = f"L{tag}_slow", f"L{tag}_cont"
    def finish():
        for r in range(4): a(f"v_add_f32_dpp v{E1+r}, v{E2+r}, v{E1+r} row_ror:8 row_mask:0xf bank_mask:0x3")
        a(f"v_add_f32_dpp v{ZD}, v{ZD}, v{ZD} row_ror:8 row_mask:0xf bank_mask:0xf")
        a(f"v_rcp_f32 v{ZD+2}, v{ZD}")
        a(f"v_cmp_nlt_f32 vcc, s{S_ZLO}, v{ZD}")
        a(f"v_cmp_ngt_f32 s[{S_T0}:{S_T0+1}], s{S_ZHI}, v{ZD}")
        for r in range(4): a(f"v_add_f32_dpp v{E1+r}, v{F1+r}, v{F2+r} row_ror:8 row_mask:0xf bank_mask:0xc")
        a(f"v_pk_mul_f32 {v(E1,2)}, {v(E1,2)}, {v(ZD+2,2)} op_sel_hi:[1,0]")
        a(f"v_pk_mul_f32 {v(E1+2,2)}, {v(E1+2,2)}, {v(ZD+2,2)} op_sel_hi:[1,0]")
        cvt(a, E1, E1, E1 + 1); cvt(a, E1 + 1, E1 + 2, E1 + 3)
        a.ds(f"ds_write_b64 v{AQ}, {v(E1,2)} offset:{w*512}", "ow")
    finish()
    stamp(a, P, 14)
    DS_, D = KB, [R1, KA, KX0, KX1]
    for q in (DS_, D[3], D[1]): zero(a, q)
    a(f"s_or_b64 vcc, vcc, s[{S_T0}:{S_T0+1}]")
    a(f"s_cbranch_scc1 {Lslow}")
    a.label(Lcont)
    zero(a, D[0])
    BPs, AAST1, AAST = SQ + 2, SQ + 3, AQ + 3
    stamp(a, P, 18)
    a.wl("ow")
    stamp(a, P, 19)
    a("s_barrier")
    stamp(a, P, 4)
    AS = [V0, V0 + 4]; AD = [QA, QB, VA, VB]
    for k in range(4): a.ds(f"ds_read_b128 {v(AD[k],4)}, v{AQ+1} offset:{k*512}", f"ad{k}")
    BPs, AAST1, AAST = SQ + 2, SQ + 3, AQ + 3
    RSEL, RD = W1, W0
    loadW(a, ("O", (1, 1)), 1, V0, "w2")
    if P.get("pub"): a(f"s_add_u32 s{S_PUB}, s{S_PUB}, {32*8192}")
    warm(P.get("wo2", 0))
    def ow(p, k):
        unit = ("O", (p, k >> 1)); half = k & 1
        if (p, k) == (2, 3): return v(W1, 8)
        if (p, k) == (1, 3): return v(V0, 8)
        return v((W0, W1)[half], 8) if unit in FULL_RES else WM.reg(unit, half)
    def o(p, k, *items): sm(D[p], AD[k], ow(p, k), *items)
    def st2(p):
        so = S_AST if p < 2 else S_AST2
        return f"buffer_store_dwordx2 {v(D[p],2)}, v{AAST}, s[8:11], s{so} offen offset:{(p&1)*2048} {sc}"
    def c2(p): return [f"v_cvt_pk_bf16_f32 v{D[p]}, v{D[p]}, v{D[p]+1}", f"v_cvt_pk_bf16_f32 v{D[p]+1}, v{D[p]+2}, v{D[p]+3}",
                       f"v_bfi_b32 v{D[p]}, 1, s{S_TAG}, v{D[p]}"]
    def ras(u): return lambda: a.ds(f"ds_read_b128 {v(AS[u],4)}, v{AQ+2} offset:{u*1024}", "as")
    U11, U21, U31 = ("O", (1, 1)), ("O", (2, 1)), ("O", (3, 1))
    a.wl("ad0")
    stamp(a, P, 16)
    vq_ += [f"v_lshrrev_b32 v{BPs}, 9, v{L16}"]
    o(0, 0, wl("ad1"))
    o(0, 1, rdW(U11, 0, W0, 0, "w0"), wl("ad2"))
    o(0, 2, rdW(U11, 0, W0, 1, "w0"), wl("ad3"))
    vq_ += [f"v_mov_b64 {v(D[2],2)}, 0", f"v_mov_b64 {v(D[2]+2,2)}, 0"]
    o(0, 3, rdW(U21, 1, W1, 0, "w1"))
    o(1, 0, rdW(U21, 1, W1, 1, "w1"))
    vq_ += c2(0)
    o(1, 1, wl("w0"))
    o(1, 2, rdW(U31, 0, W0, 0, "w0"))
    o(1, 3, ras(0))
    o(2, 0, st2(0), ras(1))
    vq_ += c2(1)
    o(2, 1, rdW(U31, 0, W0, 1, "w0"))
    o(2, 2, wl("w1"))
    o(2, 3, wl("as"))
    sm(DS_, AS[0], WM.reg(("S", 0), 0), st2(1), rdW(U31, 1, W1, 0, "w1"))
    vq_ += c2(2)
    sm(DS_, AS[1], WM.reg(("S", 0), 1), rdW(U31, 1, W1, 1, "w1"))
    o(3, 0)
    o(3, 1, wl("w0"))
    vq_ += [f"v_permlane32_swap_b32 v{DS_}, v{DS_+2}", f"v_permlane32_swap_b32 v{DS_+1}, v{DS_+3}"]
    o(3, 2, st2(2)); a.wl("w1")
    o(3, 3, stash(RSEL, 1, "rs") if w < 3 else None)
    stamp(a, P, 17)
    assert not vq_
    a(f"v_and_b32 v{AAST1}, 0xff, v{AAST}\nv_lshl_or_b32 v{AAST1}, v{BPs}, 2, v{AAST1}")
    a(f"v_add_f32 v{DS_}, v{DS_}, v{DS_+2}\nv_add_f32 v{DS_+1}, v{DS_+1}, v{DS_+3}\nv_cvt_pk_bf16_f32 v{DS_}, v{DS_}, v{DS_+1}\nv_bfi_b32 v{DS_}, 1, s{S_TAG}, v{DS_}")
    a(f"buffer_store_dword v{DS_}, v{AAST1}, s[8:11], s{S_AST1} offen {sc}")
    assert not vq_ and not sq_
    LD = [R0, R1, KX0, KX1]
    early = (w == 0)
    Lnr = f"L{tag}_nored"
    def addr_rest():
        a(f"""
        v_lshl_or_b32 v{RS}, v{BPs}, 2, v{RS}
        v_bfe_u32 v{TMP}, v{L16}, 8, 1
        v_lshl_or_b32 v{RS}, v{TMP}, 3, v{RS}
        v_bfe_u32 v{TMP}, v{L16}, 7, 1
        v_lshl_or_b32 v{RS}, v{TMP}, 31, v{RS}
        v_and_b32 v{BP}, 0x33f, v{L16}
        v_lshl_or_b32 v{BP}, v{TMP}, 6, v{BP}
        v_bfe_u32 v{TMP}, v{L16}, 6, 1
        v_lshl_or_b32 v{BP}, v{TMP}, 7, v{BP}
        """)
    for x in c2(3): a(x)
    a(st2(3))
    stamp(a, P, 5)
    def rtx(i): return f"buffer_load_dwordx4 {v(LD[i],4)}, v{RL}, s[8:11], s{S_RLD+i} offen sc1"
    CK = V0 + 4
    def tagchk(i):
        q = LD[i]
        if w == 2:
            a(f"v_bitop3_b32 v{CK+i}, v{q}, v{q+1}, s{S_TAG} bitop3:0x81\nv_bitop3_b32 v{TMP}, v{q+2}, v{q+3}, s{S_TAG} bitop3:0x81\nv_and_b32 v{CK+i}, v{CK+i}, v{TMP}")
        else:
            a(f"v_bitop3_b32 v{CK+i}, v{q}, v{q+2}, s{S_TAG} bitop3:0x81")
    def tagmask(i): a(f"v_and_b32 v{TMP}, 1, v{CK+i}\nv_cmp_eq_u32 s[{S_MK+2*i}:{S_MK+2*i+1}], 0, v{TMP}")
    def tagall(): a(f"v_bitop3_b32 v{TMP}, v{CK}, v{CK+1}, v{CK+2} bitop3:0x80\nv_bitop3_b32 v{TMP}, v{TMP}, v{CK+3}, 1 bitop3:0x80\nv_cmp_eq_u32 vcc, 0, v{TMP}")
    def rre():
        for i in range(4): masked(S_MK + 2 * i, rtx(i))
        a("s_mov_b64 exec, -1")
    tailz = [QA, QB, VA, VB]
    if w < 3:
        if w == 2: a(f"s_cmp_ge_u32 s{S_H}, 8\ns_cbranch_scc1 {Lnr}")
        a(f"v_lshrrev_b32 v{RL}, 7, v{L16}\nv_and_b32 v{RS}, 0x70, v{L16}\nv_mad_u32_u24 v{RL}, v{RL}, s{S_9216}, v{RS}")
        warm(P.get("d1e" if early else "d1", 0))
        for i in range(4): a(rtx(i))
        for q in tailz: zero(a, q)
        addr_rest()
        warm(P.get("wa1", 7))
        a.wl("rs")
        for i in range(4):
            a(f"s_waitcnt vmcnt({3-i})")
            m32(RD, LD[i], RSEL, "0" if i == 0 else v(RD, 4))
            tagchk(i)
        def rfin():
            tagall()
            a(f"""
            v_permlane32_swap_b32 v{RD}, v{RD+2}
            v_permlane32_swap_b32 v{RD+1}, v{RD+3}
            v_pk_add_f32 {v(RD,2)}, {v(RD,2)}, {v(RD+2,2)}
            v_cvt_pk_bf16_f32 v{RD}, v{RD}, v{RD+1}
            """)
        rfin()
        a(f"s_cbranch_vccnz L{tag}_rf")
        a.label(f"L{tag}_rn")
        a(f"buffer_store_dword v{RD}, v{RS}, s[8:11], s{S_RST} offen {sc}")
        stamp(a, P, 6)
        if w == 2:
            a(f"s_branch L{tag}_tail")
            a.label(Lnr)
    if w >= 2:
        for q in tailz: zero(a, q)
        addr_rest()
        nw = P.get("d3", 30)
        if w == 3 and P.get("full"):
            Lp_, Lk_ = f"L{tag}_np", f"L{tag}_nk"
            a(f"""
            s_cmp_ge_u32 s{S_H}, 9
            s_cbranch_scc1 {Lp_}
            s_sub_u32 s{S_T0}, s{S_BCL}, s{S_RHO}
            s_lshl_b32 s{S_T2}, s{S_H}, 10
            s_add_u32 s{S_T0}, s{S_T0}, s{S_T2}
            s_add_u32 s{S_T0}, s{S_T0}, {MBB}
            buffer_load_dwordx4 {v(R1,4)}, v{L16}, s[8:11], s{S_T0} offen sc1
            s_waitcnt vmcnt(0)
            buffer_store_dwordx4 {v(R1,4)}, v{L16}, s[8:11], s{S_HST} offen sc1
            s_add_u32 s{S_HST}, s{S_HST}, {HIST_STRIDE}
            s_branch {Lp_}2
            {Lp_}:
            """)
            warm(P.get("dp", 28))
            a(f"""
            {Lp_}2:
            s_add_u32 s{S_T0}, s{S_STEP}, 2
            s_and_b32 s{S_T2}, s{S_T0}, 71
            s_cbranch_scc1 {Lk_}
            s_lshr_b32 s{S_T0}, s{S_T0}, 1
            v_mov_b32 v{R2}, s{S_T0}
            {Lk_}w:
            global_load_dword v{R2+1}, v{R2}, s[{S_DBG}:{S_DBG+1}] offset:{D_KV*4} sc1
            """)
            spin()
            a(f"""
            s_waitcnt vmcnt(0)
            v_cmp_gt_u32 vcc, 32, v{R2+1}
            s_cbranch_vccnz {Lk_}w
            {Lk_}:
            """)
            nw -= P.get("dp", 28)
        warm(nw)
        if w == 3: stamp(a, P, 6)
        a.label(f"L{tag}_tail")
    a.lq = []
    a(f"s_add_u32 s{S_STEP}, s{S_STEP}, 1")
    stamp(a, P, 7)
    if P.get("stamp"):
        a.wl0()
        if "only" in P and not P.get("noacc"):
            i, j = 0, 1
            a(f"s_sub_u32 s{S_T0}, s{S_TM+2*j}, s{S_TM+2*i}\ns_add_u32 s80, s80, s{S_T0}")
        for i in range(6 if "only" not in P else 0):
            a(f"s_sub_u32 s{S_T0}, s{S_TM+2*i+2}, s{S_TM+2*i}\ns_add_u32 s{80+i}, s{80+i}, s{S_T0}")
        Lns = f"L{tag}_ns"
        a(f"s_cmp_lg_u32 s{S_STEP}, 31\ns_cbranch_scc1 {Lns}")
        for i in range(8): a(f"s_mov_b32 s{92+i}, s{S_TM+2*i}")
        a.label(Lns)
    if P.get("pub"): a(f"s_branch {Ltop}")
    else: a(f"s_cmp_lt_u32 s{S_STEP}, 63\ns_cbranch_scc1 {Ltop}\ns_branch {Lout}")
    if w < 3:
        a.label(f"L{tag}_rf")
        for i in range(4): tagmask(i)
        rre()
        warm(P.get("wr1", 4))
        a.label(f"L{tag}_rg")
        rre(); spin(1)
        for i in range(4):
            a(f"s_waitcnt vmcnt({7-i})")
            tagchk(i)
            m32(RD, LD[i], RSEL, "0" if i == 0 else v(RD, 4))
            tagmask(i)
        rfin()
        a(f"s_cbranch_vccnz L{tag}_rg\ns_branch L{tag}_rn")
    a.label(Lb)
    a(f"s_mov_b64 s[{S_MK}:{S_MK+1}], vcc")
    masked(S_MK, btx(R0, 0))
    a("s_mov_b64 exec, -1")
    for q in (QA, QB, KA, KB, VA): zero(a, q)
    warm(P.get("wb2", 3))
    a.label(Lb + "2")
    masked(S_MK, btx(R0, 0))
    a("s_mov_b64 exec, -1")
    spin()
    warm(P.get("wb3", 3))
    a("s_waitcnt vmcnt(1)")
    chkm(R0, S_MK)
    a(f"s_cmp_lg_u64 s[{S_MK}:{S_MK+1}], 0")
    a(f"s_cbranch_scc1 {Lb}2\ns_branch {Lgo}")
    a.label(Ll)
    a(btx(R2, 2))
    if n8: a(btx(L8, 1))
    spin(2)
    a("s_waitcnt vmcnt(0)")
    for x in late_v: a(x)
    a(f"s_cbranch_vccnz {Ll}\ns_branch {Llok}")
    a.label(Lslow)
    t0, t1 = E1, E1 + 1
    a(f"""
    v_max3_f32 v{t0}, v{X}, v{X+1}, v{X+2}
    v_max3_f32 v{t1}, v{X+3}, v{M}, v{M+1}
    v_max3_f32 v{t0}, v{t0}, v{M+2}, v{M+3}
    v_max_f32 v{t0}, v{t0}, v{t1}
    v_max_f32_dpp v{t0}, v{t0}, v{t0} row_ror:8 row_mask:0xf bank_mask:0xf
    v_mov_b32 v{t1}, v{t0}
    v_permlane16_swap_b32 v{t0}, v{t1}
    v_max_f32 v{t0}, v{t0}, v{t1}
    v_mov_b32 v{t1}, v{t0}
    v_permlane32_swap_b32 v{t0}, v{t1}
    v_max_f32 v{t0}, v{t0}, v{t1}
    """)
    for q in (X, M):
        for r in range(4): a(f"v_sub_f32 v{q+r}, v{q+r}, v{t0}\nv_exp_f32 v{q+r}, v{q+r}")
    cvt(a, Bq, M, M + 1); cvt(a, Bq + 1, M + 2, M + 3); cvt(a, Bq + 2, X, X + 1); cvt(a, Bq + 3, X + 2, X + 3)
    a(f"v_mov_b64 {v(QA,2)}, 0")
    a(f"v_mov_b64 {v(ON,2)}, s[{S_ONE}:{S_ONE+1}]\nv_mov_b64 {v(ON+2,2)}, s[{S_ONE+2}:{S_ONE+3}]")
    m32(E2, V0 + 4, Bq + 2); m32(F2, V1 + 4, Bq + 2)
    m32(E1, V0, Bq); m32(ZD, ON, Bq); m32(F1, V1, Bq)
    finish()
    for q in (DS_, D[3], D[1]): zero(a, q)
    a(f"s_branch {Lcont}")
    a(".filler")
    a.label(Lout)
    a.vq = []; a.lq = []
    if P.get("full"):
        if w < 3:
            a(f"s_add_u32 s{S_T0}, s{S_RHO}, {HIST + 63*HIST_STRIDE - MBB}")
            a(f"buffer_store_dword v{RD}, v{RS}, s[8:11], s{S_T0} offen sc1")
        a("s_waitcnt vmcnt(0)")
    else:
        a("s_waitcnt vmcnt(0) lgkmcnt(0)\ns_barrier")
```

```python
from asmlib import *
from layout import *
import math, struct
def fbits(x): return struct.unpack("<I", struct.pack("<f", x))[0]

S_W = 21
G_RB, G_CB, G_MAT = 30, 31, 32
G_XS, G_WS = 36, 40
G_T0, G_T1, G_IT, G_XO, G_WO, G_OUT = 44, 45, 46, 47, 48, 49
G_C = 50
L16 = 0
XD, WD, XR, WR, OA = 1, 2, 4, 6, 8
FX, FW = 16, 48
STG = 65536

def tile(a, tag):
    T = 10
    a(f"""
    s_load_dwordx2 s[{G_XS}:{G_XS+1}], s[0:1], 40
    s_cmp_eq_u32 s{G_MAT}, 0
    s_cselect_b32 s{G_T0}, 64, 72
    s_cmp_eq_u32 s{G_MAT}, 2
    s_cselect_b32 s{G_T0}, 56, s{G_T0}
    s_load_dwordx2 s[{G_WS}:{G_WS+1}], s[0:1], s{G_T0}
    v_lshrrev_b32 v{T}, 4, v{L16}
    v_lshrrev_b32 v{T+1}, 3, v{T}
    v_and_b32 v{T+2}, 7, v{T}
    v_xor_b32 v{T+2}, v{T+2}, v{T+1}
    v_lshlrev_b32 v{T+2}, 4, v{T+2}
    s_movk_i32 s{G_T1}, 1152
    v_mad_u32_u24 v{XD}, v{T+1}, s{G_T1}, v{T+2}
    v_lshrrev_b32 v{T+1}, 5, v{T}
    v_and_b32 v{T+2}, 31, v{T}
    v_lshlrev_b32 v{T+3}, 2, v{T+1}
    v_xor_b32 v{T+2}, v{T+2}, v{T+3}
    v_lshlrev_b32 v{T+2}, 4, v{T+2}
    v_lshl_add_u32 v{WD}, v{T+1}, 13, v{T+2}
    v_xor_b32 v{WD+1}, 128, v{WD}
    s_lshr_b32 s{G_T0}, s{S_W}, 1
    s_lshl_b32 s{G_T0}, s{G_T0}, 14
    v_and_b32 v{T+1}, 31, v{T}
    v_lshrrev_b32 v{T+2}, 5, v{T}
    v_and_b32 v{T+3}, 7, v{T}
    v_xor_b32 v{T+3}, v{T+3}, v{T+2}
    v_lshlrev_b32 v{T+3}, 4, v{T+3}
    v_lshl_add_u32 v{XR}, v{T+1}, 7, v{T+3}
    v_add_u32 v{XR}, s{G_T0}, v{XR}
    v_bfe_u32 v{T+1}, v{T}, 2, 2
    v_lshl_add_u32 v{T+3}, v{T+2}, 3, v{T+1}
    v_lshlrev_b32 v{T+3}, 9, v{T+3}
    v_bfe_u32 v{T+4}, v{T}, 4, 1
    v_and_b32 v{T+5}, 3, v{T}
    v_lshlrev_b32 v{T+5}, 3, v{T+5}
    v_lshl_or_b32 v{T+5}, v{T+4}, 5, v{T+5}
    v_lshl_or_b32 v{T+5}, v{T+1}, 6, v{T+5}
    v_add_u32 v{WR}, v{T+3}, v{T+5}
    s_and_b32 s{G_T0}, s{S_W}, 1
    s_lshl_b32 s{G_T0}, s{G_T0}, 8
    s_add_u32 s{G_T0}, s{G_T0}, 32768
    v_add_u32 v{WR}, s{G_T0}, v{WR}
    s_waitcnt lgkmcnt(0)
    s_mov_b32 s{G_XS+2}, 2359296
    s_mov_b32 s{G_XS+3}, 0x20000
    s_mov_b32 s{G_WS+2}, 4718592
    s_mov_b32 s{G_WS+3}, 0x20000
    s_lshl_b32 s{G_XO}, s{G_RB}, 8
    s_lshl_b32 s{G_T0}, s{S_W}, 6
    s_add_u32 s{G_XO}, s{G_XO}, s{G_T0}
    s_mul_i32 s{G_XO}, s{G_XO}, 1152
    s_lshl_b32 s{G_WO}, s{S_W}, 17
    s_lshl_b32 s{G_T0}, s{G_CB}, 9
    s_add_u32 s{G_WO}, s{G_WO}, s{G_T0}
    s_lshl_b32 s{G_OUT}, s{S_W}, 13
    """)
    XRk = [XR, XR + 1, 12, 13]; WRb = [WR, WR + 1, 14, 15]
    for kk in range(1, 4): a(f"v_xor_b32 v{XRk[kk]}, {kk*32}, v{XR}")
    for b in range(1, 4): a(f"v_xor_b32 v{WRb[b]}, {b*64}, v{WR}")
    def dma_items(st):
        it = []
        for i in range(8):
            it.append(f"s_add_u32 m0, s{G_OUT}, {st*STG + i*1024}\ns_add_u32 s{G_T0}, s{G_XO}, {i*8*1152}\n"
                      f"buffer_load_dwordx4 v{XD}, s[{G_XS}:{G_XS+3}], s{G_T0} offen lds")
            it.append(f"s_add_u32 m0, s{G_OUT}, {st*STG + 32768 + i*1024}\ns_add_u32 s{G_T0}, s{G_WO}, {i*2*8192}\n"
                      f"buffer_load_dwordx4 v{WD + (i & 1)}, s[{G_WS}:{G_WS+3}], s{G_T0} offen lds")
        return it
    adv = f"s_add_u32 s{G_XO}, s{G_XO}, 128\ns_add_u32 s{G_WO}, s{G_WO}, {64*8192}"
    def read_items(kk, buf):
        it = []
        for i in range(4):
            it.append(f"ds_read_b128 {v(FX + 16*buf + 4*i, 4)}, v{XRk[kk]} offset:{i*4096}")
            for hf in range(2):
                it.append(f"ds_read_b64_tr_b16 {v(FW + 16*buf + 4*i + 2*hf, 2)}, v{WRb[i]} offset:{(kk*16 + 4*hf)*512}")
        return it
    def kstep(buf, swap, rd, dm):
        order = sorted([(i, j) for i in range(4) for j in range(4)], key=lambda t: (max(t), t))
        for n, (i, j) in enumerate(order):
            acc = ag((i * 4 + j) * 16, 16)
            w_, x_ = v(FW + 16*buf + 4*i, 4), v(FX + 16*buf + 4*j, 4)
            A, B = (x_, w_) if swap else (w_, x_)
            a(f"v_mfma_f32_32x32x16_bf16 {acc}, {A}, {B}, {acc}")
            if rd and n < 12: a.ds(rd.pop(0), f"f{buf ^ 1}")
            if dm and n % 2 == 1: a(dm.pop(0))
    for x in dma_items(0): a(x)
    a(adv)
    for r in range(256): a(f"v_accvgpr_write_b32 a{r}, 0")
    a(f"s_cmp_eq_u32 s{G_MAT}, 1\ns_cbranch_scc1 L{tag}_v")
    def stage(st, swap, load):
        a("s_waitcnt vmcnt(0)\ns_barrier")
        a.lq = []
        for x in read_items(0, 0): a.ds(x, "f0")
        dm = dma_items(st ^ 1) if load else []
        for kk in range(4):
            a.wl(f"f{kk & 1}")
            kstep(kk & 1, swap, read_items(kk + 1, (kk + 1) & 1) if kk < 3 else None, dm)
        if load:
            a(adv)
            for r in XRk + WRb: a(f"v_xor_b32 v{r}, {STG}, v{r}")
    for swap in (0, 1):
        t2 = f"{tag}{'v' if swap else 'k'}"
        if swap: a.label(f"L{tag}_v")
        a(f"s_mov_b32 s{G_IT}, 0")
        a.label(f"L{t2}_loop")
        stage(0, swap, True); stage(1, swap, True)
        a(f"s_add_u32 s{G_IT}, s{G_IT}, 1\ns_cmp_lt_u32 s{G_IT}, 4\ns_cbranch_scc1 L{t2}_loop")
        stage(0, swap, False)
        T = 10
        a(f"v_lshrrev_b32 v{T}, 4, v{L16}\nv_lshrrev_b32 v{T+1}, 5, v{T}\nv_lshlrev_b32 v{T+1}, 8, v{T+1}")
        if swap:
            a(f"v_bfe_u32 v{T+2}, v{T}, 4, 1\nv_lshl_or_b32 v{T+1}, v{T+2}, 10, v{T+1}\nv_and_b32 v{T+2}, 0xf0, v{L16}\nv_or_b32 v{OA}, v{T+1}, v{T+2}")
        else:
            a(f"""
            v_bfe_u32 v{T+2}, v{T}, 3, 1
            v_lshl_or_b32 v{T+1}, v{T+2}, 10, v{T+1}
            v_bfe_u32 v{T+2}, v{T}, 4, 1
            v_lshl_or_b32 v{T+1}, v{T+2}, 7, v{T+1}
            v_and_b32 v{T+2}, 0x70, v{L16}
            v_or_b32 v{OA}, v{T+1}, v{T+2}
            """)
        cb = fbits((128 ** -0.5) * math.log2(math.e))
        a(f"""
        s_lshl_b32 s{G_T0}, s{G_RB}, 3
        s_lshr_b32 s{G_T1}, s{S_W}, 1
        s_lshl_b32 s{G_T1}, s{G_T1}, 2
        s_add_u32 s{G_T0}, s{G_T0}, s{G_T1}
        s_lshl_b32 s{G_OUT}, s{G_T0}, 18
        s_lshl_b32 s{G_T0}, s{G_CB}, 1
        s_and_b32 s{G_T1}, s{S_W}, 1
        s_add_u32 s{G_T0}, s{G_T0}, s{G_T1}
        s_lshl_b32 s{G_T0}, s{G_T0}, 13
        s_add_u32 s{G_OUT}, s{G_OUT}, s{G_T0}
        s_lshl_b32 s{G_T0}, s{G_MAT}, 24
        s_add_u32 s{G_OUT}, s{G_OUT}, s{G_T0}
        s_cmp_eq_u32 s{G_MAT}, 2
        s_cselect_b32 s{G_C}, {cb}, 1.0
        s_mov_b32 s{G_C+1}, s{G_C}
        s_nop 7
        s_nop 7
        """)
        n = 0
        for j in range(4):
            for i in range(4):
                a(f"s_add_u32 s{G_T0}, s{G_OUT}, {j*262144 + i*2048}")
                for jj in range(2):
                    r0 = 16 + 12 * (n % 4); n += 1
                    for e in range(8): a(f"v_accvgpr_read_b32 v{r0+e}, a{(i*4+j)*16 + 8*jj + e}")
                    if not swap:
                        for e in range(0, 8, 2): a(f"v_pk_mul_f32 {v(r0+e,2)}, {v(r0+e,2)}, s[{G_C}:{G_C+1}]")
                    for e in range(4): a(f"v_cvt_pk_bf16_f32 v{r0+8+e}, v{r0+2*e}, v{r0+2*e+1}")
                    a(f"buffer_store_dwordx4 {v(r0+8,4)}, v{OA}, s[8:11], s{G_T0} offen offset:{jj*512} sc1")
        if not swap: a(f"s_branch L{tag}_end")
    a.label(f"L{tag}_end")
    a("s_waitcnt vmcnt(0)\ns_barrier")
```

```python
MB = 1 << 20
KX = 0
VX = 16 * MB
QX = 32 * MB
KVM = 48 * MB
MBA = 64 * MB
MBA_SLOT = 1 << 19
MBB = 67 * MB
MBB_SLOT = 1 << 14
WS_BYTES = 256 * MB
DBG_PROG = 0
PROG = 68 * MB
HIST = 69 * MB
HIST_STRIDE = 16384
XP = 72 * MB
XP_SLOT = 32 * 36864
XP_TEAM = 4 * MB
XFLAG = 71 * MB
AKF = 88 * MB
AVF = AKF + 131072
D_XCD = 0
D_ARR = 40
D_CBAR = 9
D_XBAR = 10
D_HIST = 12
D_AKV = 13
D_KV = 16
D_Q = 24
```

```python
from asmlib import *
from layout import *
import math, struct
def fbits(x): return struct.unpack("<I", struct.pack("<f", x))[0]

S_H, S_W = 20, 21
X_TEAM = 19
X_SEG = 22
X_T0, X_T1, X_T2 = 24, 25, 26
X_KV = 27
X_HI = 28
X_XP = 29
X_OUT = 30
X_SPIN = 31
X_GEN = 32
X_FL = 33
X_MSK = 36
X_ONE = 52
X_OSRD = 56
S_DBG = 100
X_U2 = 62
L16, IDX, TSEL, BP, TMP = 0, 1, 2, 4, 5
RADR, OADR, SLO, SHI = 8, 9, 12, 16
WREG0 = 80
LMEM = 0
LKM = 9216
LVM = LKM + 4096
LO = LVM + 4096
LST = LO + 8192
LSTA = 147456
LSTG = 16384

def wreg(n): return (v(WREG0 + 8 * n, 8) if n < 22 else ag(8 * (n - 22), 8))
def wpair(n, jj):
    t = wreg(n); p = t[0]; b = int(t[2:t.index(":")]); return f"{p}[{b+2*jj}:{b+2*jj+1}]"
def KW(c, half): return 2 * c + half
def VW(c, half): return 18 + 2 * c + half
def OWq(T, ks):
    n = 36 + 2 * T + (ks >> 1); t = wreg(n); p = t[0]; b = int(t[2:t.index(":")]) + 4 * (ks & 1)
    return p, b
def cvt(a, d, x, y): a(f"v_cvt_pk_bf16_f32 v{d}, v{x}, v{y}")
def m32(a, d, A, B, C="0"): a(f"v_mfma_f32_16x16x32_bf16 {v(d,4)}, {A}, {B}, {C}")
def m16(a, d, A, B, C="0"): a(f"v_mfma_f32_16x16x16_bf16 {v(d,4)}, {A}, {B}, {C}")

def prologue(a, w):
    T = 20; LANE = 79
    DQ, DO, TQ, TV, TO = 78, 77, 76, 75, 74
    base = LSTG + w * 32768
    a(f"""
    v_lshrrev_b32 v{LANE}, 4, v{L16}
    v_lshrrev_b32 v{T}, 2, v{LANE}
    v_and_b32 v{T+1}, 3, v{LANE}
    v_lshlrev_b32 v{T+1}, 4, v{T+1}
    v_lshl_add_u32 v{DQ}, v{T}, 13, v{T+1}
    s_lshl_b32 s{X_T0}, s{S_H}, 8
    s_add_u32 s{X_T0}, s{X_T0}, {w*64}
    v_add_u32 v{DQ}, s{X_T0}, v{DQ}
    s_movk_i32 s{X_T1}, 1152
    s_mul_i32 s{X_T0}, s{S_H}, 147456
    v_lshrrev_b32 v{T}, 1, v{LANE}
    v_and_b32 v{T+1}, 1, v{LANE}
    v_lshlrev_b32 v{T+1}, 4, v{T+1}
    v_mad_u32_u24 v{DO}, v{T}, s{X_T1}, v{T+1}
    v_add_u32 v{DO}, s{X_T0}, v{DO}
    v_lshrrev_b32 v{T+2}, 4, v{LANE}
    v_bfe_u32 v{T+3}, v{LANE}, 2, 2
    v_and_b32 v{T+4}, 3, v{LANE}
    v_lshl_add_u32 v{T}, v{T+2}, 3, v{T+3}
    v_lshlrev_b32 v{T}, 6, v{T}
    v_add_u32 v{T}, {base}, v{T}
    v_lshl_add_u32 v{TV}, v{T+4}, 3, v{T}
    v_lshrrev_b32 v{T+1}, 1, v{T+4}
    v_lshl_add_u32 v{T}, v{T+1}, 5, v{T}
    v_and_b32 v{T+1}, 1, v{T+4}
    v_lshl_add_u32 v{TQ}, v{T+1}, 3, v{T}
    v_lshl_add_u32 v{T}, v{T+2}, 2, v{T+3}
    v_lshlrev_b32 v{T}, 5, v{T}
    v_lshl_add_u32 v{TO}, v{T+4}, 3, v{T}
    v_add_u32 v{TO}, {base}, v{TO}
    s_load_dwordx2 s[64:65], s[0:1], 64
    s_load_dwordx2 s[68:69], s[0:1], 72
    s_load_dwordx2 s[72:73], s[0:1], 80
    s_load_dwordx2 s[{X_OSRD}:{X_OSRD+1}], s[0:1], 96
    s_waitcnt lgkmcnt(0)
    s_mov_b32 s{X_OSRD+2}, 4718592
    s_mov_b32 s{X_OSRD+3}, 0x20000
    """)
    for r in (64, 68, 72): a(f"s_mov_b32 s{r+2}, 4718592\ns_mov_b32 s{r+3}, 0x20000")
    units = [("K", c) for c in range(9)] + [("V", c) for c in range(9)] + [("O", t) for t in range(9)]
    def issue(n):
        m, x = units[n]
        for i in range(4):
            if m == "O": so, vo, sr = (32 * i) * 1152 + (9 * w + x) * 32, DO, 72
            else: so, vo, sr = (64 * x + 16 * i) * 8192, DQ, (64 if m == "K" else 68)
            a(f"s_mov_b32 m0, {base + (n % 8) * 4096 + i * 1024}\ns_mov_b32 s{X_T0}, {so}")
            a.vm(f"buffer_load_dwordx4 v{vo}, s[{sr}:{sr+3}], s{X_T0} offen lds", f"u{n}")
    def consume(n):
        m, x = units[n]; sb = (n % 8) * 4096
        a.wv(f"u{n}")
        for half in range(2):
            for jj in range(4):
                if m == "K": ad, off, op = TQ, sb + (32 * (jj >> 1) + 4 * (jj & 1)) * 64 + 16 * half, KW(x, half)
                elif m == "V": ad, off, op = TV, sb + (32 * (jj >> 1) + 4 * (jj & 1)) * 64 + 32 * half, VW(x, half)
                else: ad, off, op = TO, sb + (64 * half + 16 * jj) * 32, 36 + 2 * x + half
                a.ds(f"ds_read_b64_tr_b16 {wpair(op, jj)}, v{ad} offset:{off}", "tr")
        a.wl0()
    for n in range(7): issue(n)
    for n in range(27):
        if n + 7 < 27: issue(n + 7)
        consume(n)
    qt = w & 1
    a(f"""
    v_bfe_u32 v{T+1}, v{LANE}, 3, 1
    v_cmp_eq_u32 vcc, 1, v{T+1}
    v_mov_b32 v{IDX}, 0x8888
    v_mov_b32 v{T}, 0xdddd
    v_cndmask_b32 v{IDX}, v{IDX}, v{T}, vcc
    v_and_b32 v{T}, 7, v{LANE}
    v_bfe_u32 v{T+1}, v{LANE}, 4, 1
    v_lshlrev_b32 v{T+1}, 2, v{T+1}
    v_sub_u32 v{T}, v{T}, v{T+1}
    v_and_b32 v{T+1}, 1, v{T}
    v_lshlrev_b32 v{T+1}, 4, v{T+1}
    v_mov_b32 v{T+2}, 0x3f80
    v_lshlrev_b32 v{T+2}, v{T+1}, v{T+2}
    v_ashrrev_i32 v{T}, 1, v{T}
    v_cmp_eq_u32 vcc, 0, v{T}
    v_cndmask_b32 v{TSEL}, 0, v{T+2}, vcc
    v_cmp_eq_u32 vcc, 1, v{T}
    v_cndmask_b32 v{TSEL+1}, 0, v{T+2}, vcc
    v_and_b32 v{BP}, 0x33f, v{L16}
    v_bfe_u32 v{T}, v{L16}, 7, 1
    v_lshl_or_b32 v{BP}, v{T}, 6, v{BP}
    v_bfe_u32 v{T}, v{L16}, 6, 1
    v_lshl_or_b32 v{BP}, v{T}, 7, v{BP}
    v_and_b32 v{T}, 16, v{L16}
    v_mov_b32 v{T+2}, 0x3f80
    v_lshlrev_b32 v{T+2}, v{T}, v{T+2}
    v_bfe_u32 v{T}, v{L16}, 5, 3
    """)
    for j in range(4): a(f"v_cmp_eq_u32 vcc, {j}, v{T}\nv_cndmask_b32 v{SLO+j}, 0, v{T+2}, vcc")
    for j in range(4): a(f"v_cmp_eq_u32 vcc, {j+4}, v{T}\nv_cndmask_b32 v{SHI+j}, 0, v{T+2}, vcc")
    a(f"""
    v_bfe_u32 v{T}, v{LANE}, 3, 1
    v_and_b32 v{T+1}, 7, v{LANE}
    v_lshl_add_u32 v{T}, v{T}, 4, v{T+1}
    v_lshrrev_b32 v{T+1}, 5, v{LANE}
    v_bfe_u32 v{T+2}, v{LANE}, 4, 1
    v_lshlrev_b32 v{T+2}, 2, v{T+2}
    v_lshl_add_u32 v{T+1}, v{T+1}, 4, v{T+2}
    v_sub_u32 v{T+1}, v{T}, v{T+1}
    v_add_u32 v{T+1}, {8*qt}, v{T+1}
    """)
    for tt in range(2):
        for r in range(4):
            a(f"v_cmp_le_i32 s[{X_MSK+8*tt+2*r}:{X_MSK+8*tt+2*r+1}], {8*tt+r}, v{T+1}")
    a(f"""
    v_lshrrev_b32 v{T+1}, 4, v{LANE}
    s_mov_b32 s{X_T1}, 36864
    v_and_b32 v{T+2}, 0xf0, v{L16}
    v_mad_u32_u24 v{RADR}, v{T+1}, s{X_T1}, v{T+2}
    v_bfe_u32 v{T+2}, v{LANE}, 4, 1
    v_lshl_add_u32 v{T}, v{T+2}, 3, v{T}
    s_movk_i32 s{X_T1}, 2304
    v_mul_u32_u24 v{OADR}, s{X_T1}, v{T}
    s_lshl_b32 s{X_T0}, s{S_H}, 2
    s_add_u32 s{X_T0}, s{X_T0}, {w}
    s_lshl_b32 s{X_T0}, s{X_T0}, 3
    s_add_u32 s{X_T0}, s{X_T0}, 1152
    s_lshl_b32 s{X_T1}, s{S_H}, 3
    s_add_u32 s{X_T1}, s{X_T1}, {1152 + 128*8}
    s_cmp_lt_u32 s{S_H}, 16
    s_cselect_b32 s{X_U2}, {1 if w == 0 else 0}, 0
    s_cmp_eq_u32 s{X_U2}, 1
    s_cselect_b32 s{X_T1}, s{X_T1}, 0x80000000
    v_mov_b32 v{T+1}, s{X_T0}
    v_mov_b32 v{T+2}, s{X_T1}
    v_cmp_lt_u32 vcc, 31, v{LANE}
    v_cndmask_b32 v{T+1}, v{T+1}, v{T+2}, vcc
    v_add_u32 v{OADR}, v{OADR}, v{T+1}
    s_mov_b32 s{X_ONE}, 0x3f803f80
    s_mov_b32 s{X_ONE+1}, 0x3f803f80
    s_mov_b32 s{X_ONE+2}, 0x3f003f00
    s_mov_b32 s{X_ONE+3}, 0x3f003f00
    s_mov_b32 s{X_SPIN}, 0
    s_mov_b32 s{X_SEG}, s{X_TEAM}
    s_mov_b32 s{X_GEN}, 1
    s_lshl_b32 s{X_FL}, s{X_TEAM}, 7
    s_add_u32 s{X_FL}, s{X_FL}, {XFLAG}
    s_mul_i32 s{X_XP}, s{X_TEAM}, {XP_TEAM}
    s_add_u32 s{X_XP}, s{X_XP}, {XP}
    v_add_u32 v{T}, {LSTA + w*4096}, v{L16}
    ds_write_b128 v{T}, v[2:5]
    ds_write_b128 v{T}, v[8:11] offset:1024
    ds_write_b128 v{T}, v[12:15] offset:2048
    ds_write_b128 v{T}, v[16:19] offset:3072
    s_waitcnt lgkmcnt(0)
    s_barrier
    """)

def loop(a, w, sc, Lend, nteams=2, wait_ready=True, st=False):
    tag = f"x{w}{'s' if sc else 'f'}"
    qt, fh = w & 1, w >> 1
    def spin(): a(f"s_add_u32 s{X_SPIN}, s{X_SPIN}, 1\ns_cmp_gt_u32 s{X_SPIN}, 2000000\ns_cbranch_scc1 {Lend}")
    QF, VF, T0, T1, KA, KB, VA, VB, SP = 8, 24, 40, 44, 48, 52, 56, 60, 76
    RING = [64, 68, 72]; KF = KA
    def stamp(i):
        if st: a(f"s_memtime s[76:77]\ns_waitcnt lgkmcnt(0)\ns_sub_u32 s79, s76, s78\ns_mov_b32 s78, s76\ns_add_u32 s{80+i}, s{80+i}, s79"); a.lq = []
    a.label(f"L{tag}_top")
    stamp(0)
    a(f"""
    s_lshl_b32 s{X_KV}, s{X_SEG}, 18
    s_lshl_b32 s{X_T0}, s{S_H}, 13
    s_add_u32 s{X_KV}, s{X_KV}, s{X_T0}
    s_lshl_b32 s{X_HI}, s{X_SEG}, 14
    s_add_u32 s{X_HI}, s{X_HI}, {HIST}
    s_mul_i32 s{X_OUT}, s{X_SEG}, {32*2304}
    """)
    if wait_ready:
        Lw = f"L{tag}_rdy"
        a(f"s_and_b32 s{X_T0}, s{X_SEG}, 7\ns_cmp_ge_u32 s{X_T0}, {nteams}\ns_cbranch_scc1 {Lw}k")
        a(f"s_lshr_b32 s{X_T0}, s{X_SEG}, 3\ns_lshl_b32 s{X_T0}, s{X_T0}, 2\nv_mov_b32 v{TMP}, s{X_T0}")
        a.label(Lw)
        a(f"global_load_dword v{TMP+1}, v{TMP}, s[{S_DBG}:{S_DBG+1}] offset:{D_KV*4} sc1")
        a(f"global_load_dword v{TMP+2}, v{TMP}, s[{S_DBG}:{S_DBG+1}] offset:{D_Q*4} sc1")
        spin()
        a(f"""
        s_waitcnt vmcnt(0)
        v_lshl_add_u32 v{TMP+1}, v{TMP+2}, 1, v{TMP+1}
        v_cmp_ne_u32 vcc, 64, v{TMP+1}
        s_cbranch_vccz {Lw}k
        s_sleep 8
        s_branch {Lw}
        {Lw}k:
        """)
    a(f"s_add_u32 s{X_T0}, s{X_KV}, {QX + qt*1024}")
    a(f"s_add_u32 s{X_T1}, s{X_T0}, 4096")
    for ks in range(4):
        a.vm(f"buffer_load_dwordx4 {v(QF+4*ks,4)}, v{L16}, s[8:11], s{X_T0 + (ks >> 1)} offen offset:{(ks&1)*2048} sc1", f"q{ks}")
    a(f"s_add_u32 s{X_T2}, s{X_KV}, 4096")
    for tt in range(2):
        buf = KF if tt == 0 else VF
        for ks in range(4):
            a.vm(f"buffer_load_dwordx4 {v(buf+4*ks,4)}, v{L16}, s[8:11], s{X_KV if ks < 2 else X_T2} offen offset:{(ks&1)*2048 + tt*1024} sc1", f"k{tt}{ks}")
    for tt in range(2):
        buf = KF if tt == 0 else VF
        for ks in range(4):
            a.wv(f"q{ks}", f"k{tt}{ks}")
            m32(a, (T0, T1)[tt], v(buf + 4 * ks, 4), v(QF + 4 * ks, 4), "0" if ks == 0 else v((T0, T1)[tt], 4))
    a(f"s_add_u32 s{X_T0}, s{X_KV}, {VX + fh*4096}")
    for i in range(4):
        a.vm(f"buffer_load_dwordx4 {v(VF+4*i,4)}, v{L16}, s[8:11], s{X_T0} offen offset:{i*1024} sc1", "vx")
    a(f"v_mov_b32 v{TMP}, 0xff800000")
    for tt in range(2):
        for r in range(4):
            a(f"v_cndmask_b32 v{(T0,T1)[tt]+r}, v{TMP}, v{(T0,T1)[tt]+r}, s[{X_MSK+8*tt+2*r}:{X_MSK+8*tt+2*r+1}]")
    stamp(1)
    own = [w, w + 4] + ([8] if w == 3 else [])
    PB = RING[0]
    Lh = f"L{tag}_h"
    a.label(Lh)
    for i, c in enumerate(own):
        a(f"s_add_u32 s{X_T0}, s{X_HI}, {c*1024}")
        a(f"buffer_load_dwordx4 {v(PB+4*i,4)}, v{BP}, s[8:11], s{X_T0} offen sc1")
    spin()
    a("s_waitcnt vmcnt(0)")
    regs = [PB + i for i in range(4 * len(own))]
    a(f"v_max3_u32 v{TMP}, v{regs[0]}, v{regs[1]}, v{regs[2]}")
    rest = regs[3:]
    while len(rest) >= 2:
        a(f"v_max3_u32 v{TMP}, v{TMP}, v{rest[0]}, v{rest[1]}"); rest = rest[2:]
    a(f"v_max_u32 v{TMP}, v{TMP}, v{rest[0]}")
    a(f"v_cmp_eq_u32 vcc, -1, v{TMP}\ns_cbranch_vccz {Lh}k\ns_sleep 2\ns_branch {Lh}")
    a.label(Lh + "k")
    stamp(2)
    a.vq = []
    for i, c in enumerate(own): a.ds(f"ds_write_b128 v{L16}, {v(PB+4*i,4)} offset:{LMEM + c*1024}", "mw")
    a(f"""
    s_add_u32 s{X_T0}, s{X_SEG}, {nteams}
    s_xor_b32 s{X_T0}, s{X_T0}, s{X_SEG}
    s_cmp_ge_u32 s{X_T0}, 8
    s_cselect_b32 s{X_T0}, 0x80000000, 0
    s_add_u32 s{X_T0}, s{X_T0}, {nteams*262144 + w*2048}
    s_add_u32 s{X_T0}, s{X_T0}, s{X_KV}
    v_and_b32 v{SP}, 0x1f0, v{L16}
    v_lshlrev_b32 v{SP}, 2, v{SP}
    v_lshrrev_b32 v{SP+1}, 9, v{L16}
    v_lshl_or_b32 v{SP+1}, v{SP+1}, 24, v{SP}
    v_add_u32 v{SP}, {QX}, v{SP}
    buffer_load_dword v7, v{SP+1}, s[8:11], s{X_T0} offen sc1
    buffer_load_dword v7, v{SP}, s[8:11], s{X_T0} offen sc1
    """)
    for q in (KA, KB, VA, VB): a(f"v_mov_b64 {v(q,2)}, 0\nv_mov_b64 {v(q+2,2)}, 0")
    a.wl0(); a("s_barrier")
    def rd(c): a.ds(f"ds_read_b128 {v(RING[c%3],4)}, v{L16} offset:{LMEM + c*1024}", f"A{c}")
    rd(0); rd(1); rd(2)
    for c in range(9):
        a.wl(f"A{c}")
        for d, op in ((KA, KW(c, 0)), (KB, KW(c, 1)), (VA, VW(c, 0)), (VB, VW(c, 1))):
            a(f"v_smfmac_f32_16x16x64_bf16 {v(d,4)}, {v(RING[c%3],4)}, {wreg(op)}, v{IDX}")
        if c + 3 < 9: rd(c + 3)
    cvt(a, KA, KA, KA + 1); cvt(a, KA + 1, KA + 2, KA + 3); cvt(a, KA + 2, KB, KB + 1); cvt(a, KA + 3, KB + 2, KB + 3)
    m16(a, KB, v(KA, 2), v(TSEL, 2)); m16(a, SP, v(KA + 2, 2), v(TSEL, 2))
    cvt(a, VA, VA, VA + 1); cvt(a, VA + 1, VA + 2, VA + 3); cvt(a, VA + 2, VB, VB + 1); cvt(a, VA + 3, VB + 2, VB + 3)
    a.ds(f"ds_write_b128 v{L16}, {v(VA,4)} offset:{LVM + w*1024}", "kw")
    cvt(a, KA, KB, KB + 1); cvt(a, KA + 1, KB + 2, KB + 3); cvt(a, KA + 2, SP, SP + 1); cvt(a, KA + 3, SP + 2, SP + 3)
    a.ds(f"ds_write_b128 v{L16}, {v(KA,4)} offset:{LKM + w*1024}", "kw")
    a.wl0(); a("s_barrier")
    stamp(3)
    KM = RING + [SP]; TM = VB
    for ks in range(4): a.ds(f"ds_read_b128 {v(KM[ks],4)}, v{L16} offset:{LKM + ks*1024}", f"km{ks}")
    for j in range(2): a.ds(f"ds_read_b128 {v((KA, KB)[j],4)}, v{L16} offset:{LVM + (2*fh+j)*1024}", "vm")
    a(f"v_max3_f32 v{TMP}, v{T0}, v{T0+1}, v{T0+2}\nv_max3_f32 v{TMP+1}, v{T0+3}, v{T1}, v{T1+1}\nv_max3_f32 v{TMP}, v{TMP}, v{T1+2}, v{T1+3}")
    for ks in range(4):
        a.wl(f"km{ks}")
        m32(a, TM, v(KM[ks], 4), v(QF + 4 * ks, 4), "0" if ks == 0 else v(TM, 4))
    ZD, ON, HF, PM, PX = QF, QF + 4, QF + 8, QF + 10, QF + 12
    a(f"""
    v_max3_f32 v{TMP}, v{TMP}, v{TMP+1}, v{TM}
    v_max3_f32 v{TMP}, v{TMP}, v{TM+1}, v{TM+2}
    v_max_f32 v{TMP}, v{TMP}, v{TM+3}
    v_mov_b32 v{TMP+1}, v{TMP}
    v_permlane16_swap_b32 v{TMP}, v{TMP+1}
    v_max_f32 v{TMP}, v{TMP}, v{TMP+1}
    v_mov_b32 v{TMP+1}, v{TMP}
    v_permlane32_swap_b32 v{TMP}, v{TMP+1}
    v_max_f32 v{TMP}, v{TMP}, v{TMP+1}
    """)
    for q in (T0, T1, TM):
        for r in range(4): a(f"v_sub_f32 v{q+r}, v{q+r}, v{TMP}")
    for q in (T0, T1, TM):
        for r in range(4): a(f"v_exp_f32 v{q+r}, v{q+r}")
    a(f"v_mov_b64 {v(ON,2)}, s[{X_ONE}:{X_ONE+1}]\nv_mov_b64 {v(ON+2,2)}, s[{X_ONE}:{X_ONE+1}]\nv_mov_b64 {v(HF,2)}, s[{X_ONE+2}:{X_ONE+3}]")
    cvt(a, PX, T0, T0 + 1); cvt(a, PX + 1, T0 + 2, T0 + 3); cvt(a, PX + 2, T1, T1 + 1); cvt(a, PX + 3, T1 + 2, T1 + 3)
    cvt(a, PM, TM, TM + 1); cvt(a, PM + 1, TM + 2, TM + 3)
    a.wl("vm")
    m32(a, ZD, v(ON, 4), v(PX, 4))
    for i in range(4): m32(a, KM[i], v(VF + 4 * i, 4), v(PX, 4))
    m16(a, ZD, v(HF, 2), v(PM, 2), v(ZD, 4))
    for i in range(4): m16(a, KM[i], v(KA + 2 * i, 2), v(PM, 2), v(KM[i], 4))
    a(f"v_rcp_f32 v{TMP+1}, v{ZD}")
    for i in range(4):
        for r in (0, 2): a(f"v_pk_mul_f32 {v(KM[i]+r,2)}, {v(KM[i]+r,2)}, {v(TMP+1,2)} op_sel_hi:[1,0]")
    for j in range(2):
        d0, d1 = KM[2 * j], KM[2 * j + 1]
        cvt(a, d0, d0, d0 + 1); cvt(a, d0 + 1, d0 + 2, d0 + 3); cvt(a, d0 + 2, d1, d1 + 1); cvt(a, d0 + 3, d1 + 2, d1 + 3)
        a.ds(f"ds_write_b128 v{L16}, {v(d0,4)} offset:{LO + (qt*4 + 2*fh + j)*1024}", "ow")
    a.wl0(); a("s_barrier")
    stamp(4)
    OB = 8
    for i in range(8): a.ds(f"ds_read_b128 {v(OB+4*i,4)}, v{L16} offset:{LO + i*1024}", f"o{i}")
    a(f"s_mul_i32 s{X_T0}, s{S_H}, 36864\ns_add_u32 s{X_T0}, s{X_T0}, s{X_XP}\ns_add_u32 s{X_T0}, s{X_T0}, {9*w*1024}")
    a(f"s_add_u32 s{X_T1}, s{X_T0}, 4096\ns_add_u32 s{X_T2}, s{X_T0}, 8192")
    def post(T):
        d = 40 + 8 * (T % 5)
        cvt(a, d, d, d + 1); cvt(a, d + 1, d + 2, d + 3); cvt(a, d + 2, d + 4, d + 5); cvt(a, d + 3, d + 6, d + 7)
        a(f"buffer_store_dwordx4 {v(d,4)}, v{L16}, s[8:11], s{X_T0 + (T >> 2)} offen offset:{(T&3)*1024} {sc}")
    for T in range(9):
        d = 40 + 8 * (T % 5)
        for q in range(2):
            for ks in range(4):
                if T == 0: a.wl(f"o{4*q+ks}")
                p, b = OWq(T, ks)
                m32(a, d + 4 * q, f"{p}[{b}:{b+3}]", v(OB + 16 * q + 4 * ks, 4), "0" if ks == 0 else v(d + 4 * q, 4))
            if q == 0 and T > 0: post(T - 1)
    post(8)
    stamp(5)
    STA = TMP
    a(f"v_add_u32 v{STA}, {LSTA + w*4096}, v{L16}")
    a.ds(f"ds_read_b64 v[2:3], v{STA} offset:1024", "st")
    a.ds(f"ds_read_b128 v[72:75], v{STA} offset:2048", "st")
    a.ds(f"ds_read_b128 v[76:79], v{STA} offset:3072", "st")
    a("s_waitcnt vmcnt(0) lgkmcnt(0)\ns_barrier"); a.lq = []
    if w == 0:
        a(f"""
        s_lshl_b32 s{X_T0}, s{S_H}, 2
        s_add_u32 s{X_T0}, s{X_T0}, s{X_FL}
        v_mov_b32 v6, s{X_GEN}
        v_mov_b32 v7, 0
        s_mov_b64 exec, 1
        buffer_store_dword v6, v7, s[8:11], s{X_T0} offen {sc}
        s_mov_b64 exec, -1
        """)
    Lf = f"L{tag}_fl"
    a(f"v_lshrrev_b32 v7, 2, v{L16}\nv_and_b32 v7, 0x7c, v7")
    a.label(Lf)
    a(f"buffer_load_dword v6, v7, s[8:11], s{X_FL} offen sc1")
    spin()
    a(f"s_waitcnt vmcnt(0)\nv_cmp_gt_u32 vcc, s{X_GEN}, v6\ns_cbranch_vccnz {Lf}")
    stamp(6)
    a(f"s_lshl_b32 s{X_T0}, s{S_H}, 10\ns_add_u32 s{X_T0}, s{X_T0}, {w*256}\ns_add_u32 s{X_T0}, s{X_T0}, s{X_XP}")
    for i in range(8):
        a(f"buffer_load_dwordx4 {v(8+4*i,4)}, v2, s[8:11], s{X_T0} offen sc1")
        if i < 7: a(f"s_add_u32 s{X_T0}, s{X_T0}, {4*36864}")
    if w == 0:
        a(f"s_cmp_eq_u32 s{X_U2}, 0\ns_cbranch_scc1 L{tag}_one")
        a(f"s_lshl_b32 s{X_T0}, s{S_H}, 8\ns_add_u32 s{X_T0}, s{X_T0}, {128*256}\ns_add_u32 s{X_T0}, s{X_T0}, s{X_XP}")
        for i in range(8):
            a(f"buffer_load_dwordx4 {v(40+4*i,4)}, v2, s[8:11], s{X_T0} offen sc1")
            if i < 7: a(f"s_add_u32 s{X_T0}, s{X_T0}, {4*36864}")
        for i in range(16):
            a(f"s_waitcnt vmcnt({15-i})")
            m32(a, 4, "v[72:75]" if i < 8 else "v[76:79]", v(8 + 4 * i, 4), "0" if i == 0 else "v[4:7]")
        a(f"s_branch L{tag}_two")
        a.label(f"L{tag}_one")
    for i in range(8):
        a(f"s_waitcnt vmcnt({7-i})")
        m32(a, 4, "v[72:75]", v(8 + 4 * i, 4), "0" if i == 0 else "v[4:7]")
    if w == 0: a.label(f"L{tag}_two")
    cvt(a, 8, 4, 5); cvt(a, 9, 6, 7)
    a(f"buffer_store_dwordx2 v[8:9], v3, s[{X_OSRD}:{X_OSRD+3}], s{X_OUT} offen")
    a(f"v_add_u32 v10, {LSTA + w*4096}, v{L16}")
    a(f"ds_read_b128 v[2:5], v10")
    a(f"""
    s_xor_b32 s{X_XP}, s{X_XP}, {2*MB}
    s_add_u32 s{X_GEN}, s{X_GEN}, 1
    s_add_u32 s{X_SEG}, s{X_SEG}, {nteams}
    s_cmp_lt_u32 s{X_SEG}, 64
    s_waitcnt lgkmcnt(0)
    s_cbranch_scc1 L{tag}_top
    s_waitcnt vmcnt(0)
    """)
```

```python
import sys, re
from asmlib import *
from layout import *
import chain, xteam, g1, bra
NAME = "concat_heads__grouped_kv_mqa__memory_aug_recurrent_mem_tr__prompt_kernel"
G_RND, G_X, G_TK, G_VX, G_MODE, DBG = 95, 96, 97, 98, 99, 100
S_H, S_W = 20, 21
CHAIN_P = dict(full=1, d1=24, d1e=16, d3=60, d2e=18, d2=8, wa1=4)

def wait_ge(a, lab, idx_val, Lend, sleep=4):
    a(f"v_mov_b32 v40, 0\ns_mov_b32 s94, 0")
    a.label(lab)
    for i, (idx, val) in enumerate(idx_val): a(f"global_load_dword v{41+i}, v40, s[{DBG}:{DBG+1}] offset:{idx*4} sc1")
    a(f"s_add_u32 s94, s94, 1\ns_cmp_gt_u32 s94, 2000000\ns_cbranch_scc1 {Lend}\ns_waitcnt vmcnt(0)")
    for i, (idx, val) in enumerate(idx_val):
        a(f"v_cmp_gt_u32 vcc, {val}, v{41+i}" if val <= 64 else f"v_cmp_gt_u32 vcc, {hex(val)}, v{41+i}")
        a(f"s_cbranch_vccnz {lab}z")
    a(f"s_branch {lab}k\n{lab}z:\ns_sleep {sleep}\ns_branch {lab}\n{lab}k:")

def signal(a, lab, off_expr):
    a(f"s_cmp_lg_u32 s{S_W}, 0\ns_cbranch_scc1 {lab}")
    a(f"v_mov_b32 v40, {off_expr}\nv_mov_b32 v41, 1\ns_mov_b64 exec, 1\nglobal_atomic_add v40, v41, s[{DBG}:{DBG+1}]\ns_mov_b64 exec, -1")
    a.label(lab)

def verify(a, lab, Lend, role='L_role'):
    a(f"s_cmp_lg_u32 s{G_MODE}, 0\ns_cbranch_scc1 {lab}k")
    wait_ge(a, lab + "a", [(D_ARR, 256)], Lend, 2)
    a(f"global_load_dwordx4 v[44:47], v40, s[{DBG}:{DBG+1}] offset:{D_XCD*4} sc1")
    a(f"global_load_dwordx4 v[48:51], v40, s[{DBG}:{DBG+1}] offset:{D_XCD*4+16} sc1")
    a(f"s_waitcnt vmcnt(0)\ns_mov_b32 s93, 0\ns_mov_b32 s94, s{G_TK}")
    for y in range(8):
        a(f"""
        v_readfirstlane_b32 s92, v{44+y}
        s_cmp_lg_u32 s92, 32
        s_cselect_b32 s93, 1, s93
        s_cmp_gt_u32 s{G_X}, {y}
        s_cselect_b32 s92, s92, 0
        s_add_u32 s94, s94, s92
        """)
    a(f"""
    s_mov_b32 s{G_MODE}, 1
    s_cmp_eq_u32 s93, 0
    s_cbranch_scc1 {lab}k
    s_mov_b32 s{G_MODE}, 2
    s_lshr_b32 s{G_VX}, s94, 5
    s_and_b32 s{S_H}, s94, 31
    s_waitcnt vmcnt(0) lgkmcnt(0)
    s_barrier
    s_branch {role}
    {lab}k:
    """)

def gen(P=None, fake=0):
    P = dict(CHAIN_P, **(P or {}))
    a = Asm(); E = "L_end"
    a(f"""
    s_cmp_ge_u32 s2, 256
    s_cbranch_scc1 {E}
    s_load_dwordx2 s[8:9], s[0:1], 112
    s_load_dwordx2 s[{DBG}:{DBG+1}], s[0:1], 104
    s_getreg_b32 s{G_X}, hwreg(HW_REG_XCC_ID, 0, 3)
    v_lshrrev_b32 v1, 6, v0
    v_readfirstlane_b32 s{S_W}, v1
    v_and_b32 v0, 63, v0
    v_lshlrev_b32 v0, 4, v0
    s_mov_b32 s{G_MODE}, 0
    """)
    if fake == 1: a(f"s_lshr_b32 s{G_X}, s2, 5")
    if fake == 2: a(f"s_lshr_b32 s{G_X}, s2, 6\ns_min_u32 s{G_X}, s{G_X}, 2")
    a(f"""
    s_waitcnt lgkmcnt(0)
    s_mov_b32 s10, 0x10000000
    s_mov_b32 s11, 0x20000
    s_cmp_lg_u32 s{S_W}, 0
    s_cbranch_scc1 L_tk
    s_lshl_b32 s3, s{G_X}, 2
    v_mov_b32 v40, s3
    v_mov_b32 v41, 1
    v_mov_b32 v43, 0
    s_mov_b64 exec, 1
    global_atomic_add v42, v40, v41, s[{DBG}:{DBG+1}] offset:{D_XCD*4} sc0
    s_waitcnt vmcnt(0)
    global_atomic_add v43, v41, s[{DBG}:{DBG+1}] offset:{D_ARR*4}
    ds_write_b32 v43, v42
    s_mov_b64 exec, -1
    s_waitcnt lgkmcnt(0)
    L_tk:
    s_barrier
    v_mov_b32 v43, 0
    ds_read_b32 v42, v43
    s_waitcnt lgkmcnt(0)
    v_readfirstlane_b32 s{G_TK}, v42
    s_barrier
    s_mov_b32 s{G_VX}, s{G_X}
    s_mov_b32 s{S_H}, s{G_TK}
    s_cmp_lt_u32 s{G_TK}, 32
    s_cbranch_scc1 L_role
    """)
    verify(a, "L_v0", E)
    a(f"""
    L_role:
    s_mov_b32 s{G_RND}, 0
    s_cmp_eq_u32 s{G_VX}, 0
    s_cbranch_scc1 L_chain
    L_g1:
    s_sub_u32 s3, s{G_VX}, 1
    s_lshl_b32 s3, s3, 1
    s_cmp_eq_u32 s{G_VX}, 7
    s_cselect_b32 s3, 1, s3
    s_lshl_b32 s4, s{G_VX}, 1
    s_sub_u32 s4, s4, 5
    s_cmp_eq_u32 s{G_RND}, 1
    s_cselect_b32 s3, s4, s3
    s_cmp_eq_u32 s{G_RND}, 2
    s_cselect_b32 s3, 11, s3
    s_and_b32 s4, s3, 1
    s_lshl_b32 s4, s4, 2
    s_and_b32 s5, s{S_H}, 3
    s_add_u32 s{g1.G_RB}, s4, s5
    s_lshr_b32 s4, s3, 1
    s_lshl_b32 s4, s4, 3
    s_lshr_b32 s5, s{S_H}, 2
    s_add_u32 s4, s4, s5
    s_and_b32 s{g1.G_CB}, s4, 15
    s_lshr_b32 s{g1.G_MAT}, s4, 4
    """)
    g1.tile(a, "g")
    verify(a, "L_v1", E)
    a(f"""
    s_cmp_eq_u32 s{g1.G_MAT}, 2
    s_cselect_b32 s3, {D_Q*4}, {D_KV*4}
    s_lshl_b32 s4, s{g1.G_RB}, 2
    s_add_u32 s3, s3, s4
    """)
    signal(a, "L_s1", "s3")
    a(f"""
    s_add_u32 s{G_RND}, s{G_RND}, 1
    s_cmp_lt_u32 s{G_VX}, 4
    s_cbranch_scc1 L_x
    s_cmp_eq_u32 s{G_RND}, 1
    s_cbranch_scc1 L_g1
    s_add_u32 s3, s{G_RND}, s{G_VX}
    s_cmp_eq_u32 s3, 6
    s_cbranch_scc1 L_g1
    s_sub_u32 s3, s{G_VX}, 4
    s_lshl_b32 s3, s3, 5
    s_add_u32 s{bra.A_TASK}, s3, s{S_H}
    """)
    bra.task(a, E)
    a(f"{E}:\ns_endpgm")
    E = "L_endx"
    a(f"""
    L_x:
    s_sub_u32 s{xteam.X_TEAM}, s{G_VX}, 1
    s_lshl_b32 s3, s{xteam.X_TEAM}, 5
    s_add_u32 s3, s3, s{S_H}
    s_cmp_ge_u32 s3, 64
    s_cselect_b32 s4, 0x80000000, 0
    s_lshl_b32 s3, s3, 14
    s_add_u32 s3, s3, s4
    s_lshl_b32 s4, s{S_W}, 12
    s_add_u32 s3, s3, s4
    s_add_u32 s3, s3, {HIST}
    v_mov_b64 v[40:41], -1
    v_mov_b64 v[42:43], -1
    """)
    for i in range(4): a(f"buffer_store_dwordx4 v[40:43], v0, s[8:11], s3 offen offset:{i*1024} sc1")
    a(f"""
    s_lshl_b32 s3, s{xteam.X_TEAM}, 7
    s_lshl_b32 s4, s{S_H}, 2
    s_add_u32 s3, s3, s4
    s_add_u32 s3, s3, {XFLAG}
    v_mov_b32 v44, 0
    s_mov_b64 exec, 1
    buffer_store_dword v44, v44, s[8:11], s3 offen sc1
    s_mov_b64 exec, -1
    s_waitcnt vmcnt(0)
    s_barrier
    """)
    signal(a, "L_s2", D_HIST * 4)
    for w in range(3): a(f"s_cmp_eq_u32 s{S_W}, {w}\ns_cbranch_scc1 L_xw{w}")
    for w in (3, 0, 1, 2):
        a.label(f"L_xw{w}")
        xteam.prologue(a, w)
        wait_ge(a, f"L_xb{w}", [(D_HIST, 96)], E)
        a(f"s_cmp_eq_u32 s{G_MODE}, 2\ns_cbranch_scc1 L_xs{w}")
        xteam.loop(a, w, "", E, nteams=3)
        a(f"s_branch {E}")
        a.label(f"L_xs{w}")
        xteam.loop(a, w, "sc1", E, nteams=3)
        a(f"s_branch {E}")
    a(f"{E}:\ns_endpgm\nL_role2:\ns_branch L_role")
    E = "L_endc"
    a.label("L_chain")
    for w in range(3): a(f"s_cmp_eq_u32 s{S_W}, {w}\ns_cbranch_scc1 L_cw{w}")
    for w in (3, 0, 1, 2):
        a.label(f"L_cw{w}")
        chain.prologue(a, w, P)
        verify(a, f"L_v2{w}", E, "L_role2")
        a(f"""
        s_mul_i32 s3, s{S_H}, 9216
        s_add_u32 s3, s3, {MBA + w*2048}
        s_add_u32 s4, s3, {MBA_SLOT}
        s_lshl_b32 s5, s{S_H}, 11
        s_add_u32 s5, s5, {MBB}
        v_mov_b64 v[40:41], -1
        v_mov_b64 v[42:43], -1
        """)
        for r in (3, 4):
            for i in range(3 if w == 3 else 2): a(f"buffer_store_dwordx4 v[40:43], v0, s[8:11], s{r} offen offset:{i*1024} sc1")
        if w < 2: a(f"buffer_store_dwordx4 v[40:43], v0, s[8:11], s5 offen offset:{w*1024} sc1")
        a("s_waitcnt vmcnt(0)\ns_barrier")
        signal(a, f"L_s3{w}", D_CBAR * 4)
        wait_ge(a, f"L_cb{w}", [(D_CBAR, 32), (D_HIST, 96), (D_KV, 32)], E, 1)
        a(f"s_cmp_eq_u32 s{G_MODE}, 2\ns_cbranch_scc1 L_cs{w}")
        chain.loop(a, w, P, "", E)
        a(f"s_branch {E}")
        a.label(f"L_cs{w}")
        chain.loop(a, w, P, "sc1", E)
        a(f"s_branch {E}")
    a(f"{E}:\ns_endpgm")
    fixed, nhz = fix_hazards(a.lines)
    cnt = {}
    for l in fixed:
        op = l.split(None, 1)[0]
        if not l.endswith(":") and " " in l: cnt[op] = cnt.get(op, 0) + 1
    al = {}
    for op, n in sorted(cnt.items(), key=lambda t: -t[1] * len(t[0])):
        if n * (len(op) - 3) > 400: al[op] = f"i{len(al)}"
    body = []
    for l in fixed:
        l = l.split(";")[0].rstrip()
        if not l: continue
        p = l.split(None, 1)
        if p[0] in al and len(p) > 1: l = al[p[0]] + " " + p[1].replace(", ", ",")
        body.append(l)
    mac = "".join(f".macro {n} a:vararg\n{op} \\a\n.endm\n" for op, n in al.items())
    head = open("cdna_kernels/" + NAME[:-7] + ".s.ref").read().split("; @launch")[0]
    doc = open("header.txt").read() if __import__("os").path.exists("header.txt") else ""
    txt = head + "; @launch grid=(256,1,1) block=(256,1,1) lds=163840\n" + doc
    txt += '.amdgcn_target "amdgcn-amd-amdhsa--gfx950"\n' + mac + f".text\n.globl {NAME}\n.p2align 8\n.type {NAME},@function\n{NAME}:\n"
    txt += "\n".join(body) + '\n.section .rodata,"a"\n.p2align 6\n' + kernel_desc(NAME, 512, 102, 256)
    return txt

if __name__ == "__main__":
    out = sys.argv[1] if len(sys.argv) > 1 else "cdna_kernels/" + NAME[:-7] + ".s"
    P = eval(sys.argv[2]) if len(sys.argv) > 2 else {}
    fake = int(sys.argv[3]) if len(sys.argv) > 3 else 0
    t = gen(P, fake); open(out, "w").write(t); print(out, len(t), "bytes")
```

```python
from asmlib import *
from layout import *
import math, struct
def fbits(x): return struct.unpack("<I", struct.pack("<f", x))[0]

S_W = 21
A_TASK = 22
A_T0, A_T1, A_T2 = 24, 25, 26
A_K, A_HEAD, A_SPIN, A_SL, A_LO = 27, 28, 29, 30, 31
A_G0 = 32
A_WS = 36
A_XS = 40
A_OS = 44
S_DBG = 100
L16, LANE, TRA, TMP = 0, 1, 2, 4
XF = 16
ACC = 88
WF = 124
SLAB = 36864
LQ = 3 * SLAB
LO = LQ + 32768
OP = 1168
assert LO + 16 * OP <= 163840

def cvt(a, d, x, y): a(f"v_cvt_pk_bf16_f32 v{d}, v{x}, v{y}")
def m32(a, d, A, B, C="0"): a(f"v_mfma_f32_16x16x32_bf16 {v(d,4)}, {A}, {B}, {C}")

def skinny(a, tag, ptr_off):
    a(f"""
    s_load_dwordx2 s[{A_WS}:{A_WS+1}], s[0:1], {ptr_off}
    s_mul_i32 s{A_LO}, s{S_W}, 9216
    s_waitcnt lgkmcnt(0)
    s_mov_b32 s{A_WS+2}, 663552
    s_mov_b32 s{A_WS+3}, 0x20000
    """)
    def dma(k):
        for i in range(9):
            a(f"s_add_u32 m0, s{A_LO}, {(k % 3) * SLAB + i * 1024}\ns_add_u32 s{A_T0}, s{A_LO}, {k * SLAB + i * 1024}")
            a.vm(f"buffer_load_dwordx4 v{L16}, s[{A_WS}:{A_WS+3}], s{A_T0} offen lds", f"s{k}")
    a("s_barrier")
    dma(0); dma(1)
    for k in range(18):
        a.wv(f"s{k}")
        a("s_barrier")
        if k + 2 < 18: dma(k + 2)
        ad = TRA + (1 if k % 3 == 2 else 0); sb = (k % 3) * SLAB - (65536 if k % 3 == 2 else 0)
        for t in range(9):
            for hf in range(2):
                a.ds(f"ds_read_b64_tr_b16 {v(WF + 4*t + 2*hf, 2)}, v{ad} offset:{sb + t*32 + hf*4*1152}", f"w{t}")
        for t in range(9):
            a.wl(f"w{t}")
            m32(a, ACC + 4 * t, v(WF + 4 * t, 4), v(XF + 4 * k, 4), "0" if k == 0 else v(ACC + 4 * t, 4))

def task(a, Lend):
    tag = "a"
    T = TMP
    a(f"""
    s_load_dwordx2 s[{A_XS}:{A_XS+1}], s[0:1], 0
    s_load_dwordx2 s[{A_OS}:{A_OS+1}], s[0:1], 96
    s_cmp_lt_u32 s{S_W}, 2
    s_cselect_b32 s{A_T0}, 16, 24
    s_load_dwordx2 s[{A_WS}:{A_WS+1}], s[0:1], s{A_T0}
    v_lshrrev_b32 v{LANE}, 4, v{L16}
    v_and_b32 v{T}, 15, v{LANE}
    v_lshrrev_b32 v{T+1}, 4, v{LANE}
    s_movk_i32 s{A_T1}, 1152
    v_lshlrev_b32 v{T+2}, 4, v{T+1}
    v_mad_u32_u24 v{T+2}, v{T}, s{A_T1}, v{T+2}
    s_mul_i32 s{A_T2}, s{A_TASK}, {16*1152}
    s_mov_b64 s[{A_G0}:{A_G0+1}], 0xffff
    s_mov_b32 s{A_SPIN}, 0
    s_waitcnt lgkmcnt(0)
    s_mov_b32 s{A_XS+2}, 2359296
    s_mov_b32 s{A_XS+3}, 0x20000
    s_mov_b32 s{A_OS+2}, 4718592
    s_mov_b32 s{A_OS+3}, 0x20000
    s_mov_b32 s{A_WS+2}, 20736
    s_mov_b32 s{A_WS+3}, 0x20000
    """)
    for k in range(18): a.vm(f"buffer_load_dwordx4 {v(XF+4*k,4)}, v{T+2}, s[{A_XS}:{A_XS+3}], s{A_T2} offen offset:{64*k}", "x")
    GW = 160
    a(f"""
    s_and_b32 s{A_T0}, s{S_W}, 1
    s_lshl_b32 s{A_T0}, s{A_T0}, 4
    v_add_u32 v{T+3}, s{A_T0}, v{T}
    v_mul_u32_u24 v{T+4}, 288, v{T+1}
    v_lshl_add_u32 v{T+4}, v{T+3}, 1, v{T+4}
    v_cmp_lt_u32 vcc, 17, v{T+3}
    v_mov_b32 v{T+5}, 0x80000000
    v_cndmask_b32 v{T+4}, v{T+4}, v{T+5}, vcc
    """)
    def merge(k):
        a.wv(f"g{k}")
        for j in range(4): a(f"v_lshl_or_b32 v{GW + 4*k + j}, v{ACC + 8*(k % 6) + 2*j + 1}, 16, v{ACC + 8*(k % 6) + 2*j}")
    for k in range(18):
        if k >= 5: merge(k - 5)
        a(f"s_movk_i32 s{A_T0}, {32*36*k}")
        for e in range(8):
            a.vm(f"buffer_load_ushort v{ACC + 8*(k % 6) + e}, v{T+4}, s[{A_WS}:{A_WS+3}], s{A_T0} offen offset:{36*e}", f"g{k}")
    for k in range(13, 18): merge(k)
    a(f"v_mov_b64 {v(ACC,2)}, 0\nv_mov_b64 {v(ACC+2,2)}, 0\ns_lshl_b32 s{A_T0}, s{S_W}, 13\ns_add_u32 s{A_T0}, s{A_T0}, {LQ}\nv_add_u32 v{T+5}, s{A_T0}, v{L16}")
    for i in range(8): a(f"ds_write_b128 v{T+5}, {v(ACC,4)} offset:{i*1024}")
    a.wv0()
    a(f"s_cmp_ge_u32 s{S_W}, 2\ns_cbranch_scc1 L{tag}_vp")
    for k in range(18): m32(a, ACC, v(GW + 4 * k, 4), v(XF + 4 * k, 4), "0" if k == 0 else v(ACC, 4))
    a(f"""
    s_cmp_eq_u32 s{S_W}, 1
    s_cselect_b64 vcc, s[{A_G0}:{A_G0+1}], 0
    v_cndmask_b32 v{ACC+2}, v{ACC+2}, 1.0, vcc
    s_lshl_b32 s{A_T0}, s{A_TASK}, 10
    s_lshl_b32 s{A_T1}, s{S_W}, 3
    s_add_u32 s{A_T0}, s{A_T0}, s{A_T1}
    s_add_u32 s{A_T0}, s{A_T0}, {AKF}
    s_branch L{tag}_kvs
    L{tag}_vp:
    """)
    for k in range(18): m32(a, ACC, v(XF + 4 * k, 4), v(GW + 4 * k, 4), "0" if k == 0 else v(ACC, 4))
    a(f"v_cmp_eq_u32 vcc, 18, v{T+3}")
    for r in range(4): a(f"v_cndmask_b32 v{ACC+r}, v{ACC+r}, 1.0, vcc")
    a(f"""
    s_lshr_b32 s{A_T0}, s{A_TASK}, 1
    s_lshl_b32 s{A_T0}, s{A_T0}, 11
    s_and_b32 s{A_T1}, s{A_TASK}, 1
    s_lshl_b32 s{A_T1}, s{A_T1}, 3
    s_add_u32 s{A_T0}, s{A_T0}, s{A_T1}
    s_and_b32 s{A_T1}, s{S_W}, 1
    s_lshl_b32 s{A_T1}, s{A_T1}, 10
    s_add_u32 s{A_T0}, s{A_T0}, s{A_T1}
    s_add_u32 s{A_T0}, s{A_T0}, {AVF}
    L{tag}_kvs:
    """)
    cvt(a, ACC, ACC, ACC + 1); cvt(a, ACC + 1, ACC + 2, ACC + 3)
    a(f"""
    buffer_store_dwordx2 {v(ACC,2)}, v{L16}, s[8:11], s{A_T0} offen sc1
    s_waitcnt vmcnt(0) lgkmcnt(0)
    s_barrier
    s_cmp_lg_u32 s{S_W}, 0
    s_cbranch_scc1 L{tag}_nosig
    v_mov_b32 v{T+5}, 0
    v_mov_b32 v{T+6}, 1
    s_mov_b64 exec, 1
    global_atomic_add v{T+5}, v{T+6}, s[{S_DBG}:{S_DBG+1}] offset:{D_AKV*4}
    s_mov_b64 exec, -1
    s_waitcnt vmcnt(0)
    L{tag}_nosig:
    v_bfe_u32 v{T+3}, v{LANE}, 2, 2
    v_lshl_add_u32 v{T+3}, v{T+1}, 3, v{T+3}
    s_movk_i32 s{A_T1}, 1152
    v_and_b32 v{T+4}, 3, v{LANE}
    v_lshlrev_b32 v{T+4}, 3, v{T+4}
    v_mad_u32_u24 v{TRA}, v{T+3}, s{A_T1}, v{T+4}
    s_mul_i32 s{A_T0}, s{S_W}, 288
    v_add_u32 v{TRA}, s{A_T0}, v{TRA}
    v_add_u32 v{TRA+1}, 65536, v{TRA}
    """)
    skinny(a, "aq", 8)
    cb = fbits((18 ** -0.5) * math.log2(math.e))
    a(f"""
    s_mul_i32 s{A_T0}, s{S_W}, 144
    v_lshl_add_u32 v{T+2}, v{T+1}, 2, s{A_T0}
    v_lshlrev_b32 v{T+3}, 4, v{T}
    v_add_u32 v{T+3}, {LQ}, v{T+3}
    s_mov_b32 s{A_T1}, {cb}
    s_movk_i32 s{A_T2}, 3641
    """)
    for t in range(9):
        for r in range(4):
            x = ACC + 4 * t + r
            a(f"""
            v_add_u32 v{T+4}, {16*t + r}, v{T+2}
            v_mul_u32_u24 v{T+5}, s{A_T2}, v{T+4}
            v_lshrrev_b32 v{T+5}, 16, v{T+5}
            v_mul_u32_u24 v{T+6}, 18, v{T+5}
            v_sub_u32 v{T+4}, v{T+4}, v{T+6}
            v_lshl_add_u32 v{T+5}, v{T+5}, 10, v{T+3}
            v_bfe_u32 v{T+6}, v{T+4}, 2, 2
            v_lshl_add_u32 v{T+5}, v{T+6}, 8, v{T+5}
            v_and_b32 v{T+6}, 3, v{T+4}
            v_lshl_add_u32 v{T+5}, v{T+6}, 1, v{T+5}
            v_lshrrev_b32 v{T+4}, 4, v{T+4}
            v_lshl_add_u32 v{T+5}, v{T+4}, 3, v{T+5}
            v_mul_f32 v{x}, s{A_T1}, v{x}
            v_cvt_pk_bf16_f32 v{x}, v{x}, v{x}
            ds_write_b16 v{T+5}, v{x}
            """)
    a(f"v_mov_b32 v{T+5}, 0\ns_cmp_lg_u32 s{S_W}, 0\ns_cbranch_scc1 L{tag}_kvb\ns_mov_b64 exec, 1")
    a.label(f"L{tag}_kvw")
    a(f"""
    global_load_dword v{T+6}, v{T+5}, s[{S_DBG}:{S_DBG+1}] offset:{D_AKV*4} sc1
    s_add_u32 s{A_SPIN}, s{A_SPIN}, 1
    s_cmp_gt_u32 s{A_SPIN}, 2000000
    s_cbranch_scc1 {Lend}
    s_waitcnt vmcnt(0)
    v_cmp_gt_u32 vcc, 128, v{T+6}
    s_cbranch_vccz L{tag}_kvk
    s_sleep 16
    s_branch L{tag}_kvw
    L{tag}_kvk:
    s_mov_b64 exec, -1
    L{tag}_kvb:
    s_barrier
    s_lshl_b32 s{A_T0}, s{S_W}, 15
    s_add_u32 s{A_T1}, s{A_T0}, {AVF}
    s_add_u32 s{A_T0}, s{A_T0}, {AKF}
    """)
    for m, sr in ((0, A_T0), (1, A_T1)):
        for i in range(32):
            a(f"buffer_load_dwordx4 {ag(128*m + 4*i, 4)}, v{L16}, s[8:11], s{sr} offen offset:{(i & 3)*1024} sc1")
            if i & 3 == 3: a(f"s_add_u32 s{sr}, s{sr}, 4096")
        if m == 0: a("s_waitcnt vmcnt(16)")
    QA_, PA_, RA_, OA_ = 12, 13, 14, 15
    a(f"""
    v_add_u32 v{QA_}, {LQ}, v{L16}
    s_lshl_b32 s{A_T0}, s{S_W}, 11
    v_add_u32 v{PA_}, s{A_T0}, v{L16}
    s_lshl_b32 s{A_T0}, s{S_W}, 13
    v_add_u32 v{RA_}, s{A_T0}, v{L16}
    s_movk_i32 s{A_T1}, {OP}
    v_lshlrev_b32 v{T+2}, 3, v{T+1}
    v_mad_u32_u24 v{OA_}, v{T}, s{A_T1}, v{T+2}
    s_mul_i32 s{A_T0}, s{S_W}, 36
    s_add_u32 s{A_T0}, s{A_T0}, {LO}
    v_add_u32 v{OA_}, s{A_T0}, v{OA_}
    s_mov_b32 s{A_HEAD}, 0
    s_waitcnt vmcnt(0) lgkmcnt(0)
    s_barrier
    """)
    Q, O0, O1, MX, PQ = 16, 20, 24, 28, 32
    SD = 40
    a.label(f"L{tag}_grp")
    a(f"s_mov_b32 s{A_K}, 0")
    a.label(f"L{tag}_head")
    a(f"ds_read_b128 {v(Q,4)}, v{QA_}\nv_add_u32 v{QA_}, 1024, v{QA_}\ns_waitcnt lgkmcnt(0)")
    def kf(j): return ag(4 * j, 4)
    def vf(b, ft): return ag(128 + 8 * b + 4 * ft, 4)
    LAG = 3
    for j in range(32 + LAG):
        if j < 32: m32(a, SD + 4 * (j % 8), kf(j), v(Q, 4))
        if j >= LAG:
            d = SD + 4 * ((j - LAG) % 8); mx = MX + ((j - LAG) & 1)
            if j - LAG < 2: a(f"v_max3_f32 v{mx}, v{d}, v{d+1}, v{d+2}\nv_max_f32 v{mx}, v{mx}, v{d+3}")
            else: a(f"v_max3_f32 v{mx}, v{mx}, v{d}, v{d+1}\nv_max3_f32 v{mx}, v{mx}, v{d+2}, v{d+3}")
    a(f"""
    v_max_f32 v{MX}, v{MX}, v{MX+1}
    v_mov_b32 v{MX+1}, v{MX}
    v_permlane16_swap_b32 v{MX}, v{MX+1}
    v_max_f32 v{MX}, v{MX}, v{MX+1}
    v_mov_b32 v{MX+1}, v{MX}
    v_permlane32_swap_b32 v{MX}, v{MX+1}
    v_max_f32 v{MX}, v{MX}, v{MX+1}
    v_cvt_pk_bf16_f32 v{MX}, -v{MX}, 0
    v_cndmask_b32 v{Q+3}, 0, v{MX}, s[{A_G0}:{A_G0+1}]
    v_lshlrev_b32 v{MX}, 16, v{MX}
    """)
    def S(b):
        for i in range(2): m32(a, SD + 8 * (b % 4) + 4 * i, kf(2 * b + i), v(Q, 4))
    S(0); S(1)
    for b in range(16):
        d = SD + 8 * (b % 4); p = PQ + 4 * (b & 1)
        seq = []
        if b + 2 < 16: seq += [lambda i=i: m32(a, SD + 8 * ((b + 2) % 4) + 4 * i, kf(2 * (b + 2) + i), v(Q, 4)) for i in range(2)]
        if b > 0:
            pp = PQ + 4 * ((b - 1) & 1)
            seq += [lambda ft=ft: m32(a, (O0, O1)[ft], vf(b - 1, ft), v(pp, 4), "0" if b == 1 else v((O0, O1)[ft], 4)) for ft in range(2)]
        for e in range(8):
            if e % 2 == 0 and seq: seq.pop(0)()
            a(f"v_exp_f32 v{d+e}, v{d+e}")
            if e % 2 == 1 and e > 1: cvt(a, p + (e >> 1) - 1, d + e - 3, d + e - 2)
        cvt(a, p + 3, d + 6, d + 7)
    for ft in range(2): m32(a, (O0, O1)[ft], vf(15, ft), v(PQ + 4, 4), v((O0, O1)[ft], 4))
    a(f"""
    v_mov_b32 v{O1+3}, v{MX}
    ds_write_b128 v{PA_}, {v(O0,4)}
    ds_write_b128 v{PA_}, {v(O1,4)} offset:1024
    v_add_u32 v{PA_}, 8192, v{PA_}
    s_add_u32 s{A_K}, s{A_K}, 1
    s_cmp_lt_u32 s{A_K}, 4
    s_cbranch_scc1 L{tag}_head
    s_waitcnt lgkmcnt(0)
    s_barrier
    v_and_b32 v{T+2}, 0xfffffcff, v{RA_}
    """)
    PO, PZ = 40, 56
    for i in range(4):
        a(f"ds_read_b128 {v(PO+4*i,4)}, v{RA_} offset:{i*2048}\nds_read_b128 {v(PZ+4*i,4)}, v{T+2} offset:{i*2048 + 1024}")
    a(f"""
    s_waitcnt lgkmcnt(0)
    v_min3_f32 v{MX}, v{PZ+3}, v{PZ+7}, v{PZ+11}
    v_min_f32 v{MX}, v{MX}, v{PZ+15}
    """)
    for i in range(4): a(f"v_sub_f32 v{PZ+4*i+3}, v{MX}, v{PZ+4*i+3}\nv_exp_f32 v{PZ+4*i+3}, v{PZ+4*i+3}")
    for r in range(4): a(f"v_mul_f32 v{PO+r}, v{PO+r}, v{PZ+3}")
    for r in range(3): a(f"v_mul_f32 v{PZ+r}, v{PZ+r}, v{PZ+3}")
    for i in range(1, 4):
        for r in range(4): a(f"v_fmac_f32 v{PO+r}, v{PO+4*i+r}, v{PZ+4*i+3}")
        for r in range(3): a(f"v_fmac_f32 v{PZ+r}, v{PZ+4*i+r}, v{PZ+4*i+3}")
    a(f"v_rcp_f32 v{PZ+2}, v{PZ+2}")
    for r in range(4): a(f"v_mul_f32 v{PO+r}, v{PO+r}, v{PZ+2}")
    for r in range(2): a(f"v_mul_f32 v{PZ+r}, v{PZ+r}, v{PZ+2}")
    cvt(a, PO, PO, PO + 1); cvt(a, PO + 1, PO + 2, PO + 3); cvt(a, PZ, PZ, PZ + 1)
    a(f"""
    ds_write_b32 v{OA_}, v{PO}
    ds_write_b32 v{OA_}, v{PO+1} offset:4
    s_mov_b64 exec, s[{A_G0}:{A_G0+1}]
    ds_write_b32 v{OA_}, v{PZ} offset:32
    s_mov_b64 exec, -1
    v_add_u32 v{OA_}, 144, v{OA_}
    v_xor_b32 v{RA_}, 32768, v{RA_}
    v_and_b32 v{PA_}, 65535, v{PA_}
    s_add_u32 s{A_HEAD}, s{A_HEAD}, 4
    s_cmp_lt_u32 s{A_HEAD}, 32
    s_cbranch_scc1 L{tag}_grp
    s_waitcnt lgkmcnt(0)
    s_barrier
    s_movk_i32 s{A_T1}, {OP}
    v_lshlrev_b32 v{T+2}, 4, v{T+1}
    v_mad_u32_u24 v{T+2}, v{T}, s{A_T1}, v{T+2}
    v_add_u32 v{T+2}, {LO}, v{T+2}
    """)
    for k in range(18): a(f"ds_read_b128 {v(XF+4*k,4)}, v{T+2} offset:{64*k}")
    a("s_waitcnt lgkmcnt(0)")
    skinny(a, "ao", 32)
    a(f"""
    s_movk_i32 s{A_T1}, 2304
    v_lshlrev_b32 v{T+2}, 3, v{T+1}
    v_mad_u32_u24 v{T+2}, v{T}, s{A_T1}, v{T+2}
    s_mul_i32 s{A_T0}, s{A_TASK}, {16*2304}
    s_mul_i32 s{A_T1}, s{S_W}, 288
    s_add_u32 s{A_T0}, s{A_T0}, s{A_T1}
    """)
    for t in range(9):
        d = ACC + 4 * t
        cvt(a, d, d, d + 1); cvt(a, d + 1, d + 2, d + 3)
        a(f"buffer_store_dwordx2 {v(d,2)}, v{T+2}, s[{A_OS}:{A_OS+3}], s{A_T0} offen offset:{32*t}")
    a("s_waitcnt vmcnt(0)")
```

```python
from asmlib import *
from layout import *
import math, struct

def fbits(x): return struct.unpack("<I", struct.pack("<f", x))[0]

L16, IDX, TSEL, AW, PFD, MEMA, SWA = 0, 1, 2, 4, 5, 6, 7
KX0, KX1 = 8, 12
V0, V1 = 16, 22
QA, QB, KA, KB, VA, VB, R0, R1, R2, W0, W1 = 28, 32, 36, 40, 44, 48, 52, 56, 60, 64, 72
WREG0 = 80
LW = 0
LMEM = 147456
LSX = LMEM + 8192
LST = LSX + 4096
assert LST + 4096 == 163840
S_H, S_W = 20, 21
S_T0, S_T1, S_T2 = 22, 23, 24
S_STEP = 25
S_AST, S_AST2, S_AST1 = 26, 27, 28
S_RLD = 29
S_RST, S_BCL = 33, 34
S_BP = 35
S_KV, S_KV2, S_PUB = 38, 39, 40
S_RHO = 41
S_C = 42
S_HI8 = 44
S_SPIN = 46
S_BSL = 47
S_ONE = 48
S_DBG = 100
S_BC2 = 52
S_HST = 53
S_HS2, S_HS3 = 4, 5
S_ZLO, S_ZHI = 54, 55
S_TM = 56
S_9216 = 77
S_ASL = 78
S_BA = 79
S_BR = 7
S_TAG = 76
S_ACLX = 76
S_MK = 12

HALF_RES = [("K", p) for p in range(9)] + [("V", 8), ("V", 7), ("O", (2, 1))]
RES_HALF = {x: 1 for x in HALF_RES}
FULL_RES = [("O", (0, 0)), ("O", (1, 1)), ("O", (3, 1))]

def chunk_of(w, p):
    e = [(w + k) % 4 for k in (1, 2, 3)]
    return ([w] + e + [w + 4, 8] + [c + 4 for c in e])[p]

class WMap:
    def __init__(self):
        units = [(m, u) for m in "QKV" for u in range(9)] + [("O", (p, u)) for p in range(4) for u in range(2)] + [("S", 0)]
        full = [x for x in units if x not in HALF_RES and x not in FULL_RES]
        self.order = full + HALF_RES + FULL_RES
        self.loc = {}; self.lds = {}
        n = 0
        for x in self.order:
            for half in range(2):
                if x in FULL_RES: self.lds[(x, half)] = (6 + FULL_RES.index(x)) * 4096 + half * 2048
                elif x in HALF_RES and half == RES_HALF[x]: self.lds[(x, half)] = HALF_RES.index(x) * 2048
                else:
                    self.loc[(x, half)] = v(WREG0 + 8 * n, 8) if n < 22 else ag(8 * (n - 22), 8)
                    n += 1
        assert n == 54
        self.order = HALF_RES + full + FULL_RES
        N = len(self.order); self.raw = [None] * N; self.issue_at = [None] * N
        busy = {}
        def dead_from(slot):
            if slot == 9: return 99
            if slot >= 6: return self.order.index(FULL_RES[slot - 6])
            return self.order.index(HALF_RES[2 * slot])
        nxt = 0
        for c in range(N):
            while nxt < N and nxt < c + 9:
                x = self.order[nxt]
                if x in FULL_RES: cand = [6 + FULL_RES.index(x)]
                else: cand = [s_ for s_ in range(10) if dead_from(s_) > nxt or (dead_from(s_) == nxt and s_ < 6)]
                cand = [s_ for s_ in cand if s_ not in busy]
                if not cand: break
                s_ = min(cand, key=dead_from)
                busy[s_] = nxt; self.raw[nxt] = s_; self.issue_at[nxt] = c; nxt += 1
            assert self.raw[c] is not None
            del busy[self.raw[c]]
    def reg(self, unit, half): return self.loc[(unit, half)]
    def regpair(self, unit, half, jj):
        t = self.loc[(unit, half)]; p = t[0]; b = int(t[2:t.index(":")])
        return f"{p}[{b+2*jj}:{b+2*jj+1}]"

WM = WMap()

def smf(a, d, A, B): a(f"v_smfmac_f32_16x16x64_bf16 {v(d,4)}, {v(A,4)}, {B}, {v(IDX)}")
def zero(a, q): a(f"v_mov_b64 {v(q,2)}, 0\nv_mov_b64 {v(q+2,2)}, 0")
def cvt(a, d, x, y): a(f"v_cvt_pk_bf16_f32 v{d}, v{x}, v{y}")
def loadW(a, unit, half, dst, tag):
    off = WM.lds[(unit, half)]
    a.ds(f"ds_read_b128 {v(dst,4)}, v{AW} offset:{off}", tag)
    a.ds(f"ds_read_b128 {v(dst+4,4)}, v{AW} offset:{off+1024}", tag)
NST = 9
def stamp(a, P, i):
    if P.get("stamp") and (i in P.get("only", range(8))):
        if "only" in P and len(P["only"]) == 2: i = list(P["only"]).index(i)
        a(f"{'s_memrealtime' if P['stamp'] == 2 else 's_memtime'} s[{S_TM+2*i}:{S_TM+2*i+1}]")

def prologue(a, w, P, mid=None):
    T = 28; LANE = 79
    DQ, DO, DS_ = 78, 77, 76
    TQ, TV, TO, TS = 72, 70, 68, 66
    base = LW + w * 36864
    misc = LMEM + w * 4096
    GB, RR, CC = T + 2, T + 3, T + 4
    a(f"""
    v_lshrrev_b32 v{LANE}, 4, v{L16}
    v_lshrrev_b32 v{T}, 2, v{LANE}
    v_and_b32 v{T+1}, 3, v{LANE}
    v_lshlrev_b32 v{T+1}, 4, v{T+1}
    v_lshl_add_u32 v{DQ}, v{T}, 13, v{T+1}
    s_lshl_b32 s{S_T0}, s{S_H}, 8
    s_add_u32 s{S_T0}, s{S_T0}, {w*64}
    v_add_u32 v{DQ}, s{S_T0}, v{DQ}
    s_movk_i32 s{S_T1}, 1152
    v_mad_u32_u24 v{DO}, v{T}, s{S_T1}, v{T+1}
    s_mul_i32 s{S_T0}, s{S_H}, 147456
    v_add_u32 v{DO}, s{S_T0}, v{DO}
    v_lshrrev_b32 v{T}, 1, v{LANE}
    v_and_b32 v{T+1}, 1, v{LANE}
    v_lshlrev_b32 v{T+1}, 4, v{T+1}
    v_mad_u32_u24 v{DS_}, v{T}, s{S_T1}, v{T+1}
    v_add_u32 v{DS_}, s{S_T0}, v{DS_}
    v_lshrrev_b32 v{GB}, 4, v{LANE}
    v_bfe_u32 v{RR}, v{LANE}, 2, 2
    v_and_b32 v{CC}, 3, v{LANE}
    v_lshl_add_u32 v{T}, v{GB}, 3, v{RR}
    v_lshlrev_b32 v{T}, 6, v{T}
    v_add_u32 v{T}, {base}, v{T}
    v_lshl_add_u32 v{TV}, v{CC}, 3, v{T}
    v_lshrrev_b32 v{T+1}, 1, v{CC}
    v_lshl_add_u32 v{T}, v{T+1}, 5, v{T}
    v_and_b32 v{T+1}, 1, v{CC}
    v_lshl_add_u32 v{TQ}, v{T+1}, 3, v{T}
    v_and_b32 v{T}, 1, v{GB}
    v_lshlrev_b32 v{T}, 4, v{T}
    v_lshrrev_b32 v{T+1}, 1, v{GB}
    v_lshl_add_u32 v{T}, v{T+1}, 2, v{T}
    v_lshrrev_b32 v{T+1}, 1, v{RR}
    v_add_u32 v{T}, v{T}, v{T+1}
    v_and_b32 v{T+1}, 1, v{RR}
    v_lshlrev_b32 v{T+5}, 3, v{CC}
    v_add_u32 v{T+5}, {base}, v{T+5}
    v_lshl_add_u32 v{TO}, v{T}, 6, v{T+5}
    v_lshl_add_u32 v{TO}, v{T+1}, 5, v{TO}
    v_lshl_add_u32 v{TS}, v{T}, 5, v{T+5}
    v_lshl_add_u32 v{TS}, v{T+1}, 10, v{TS}
    v_add_u32 v{AW}, {base}, v{L16}
    """)
    for t in (TQ, TV, TO, TS): a(f"v_add_u32 v{t+1}, {misc - base}, v{t}")
    ptr = {"Q": 56, "K": 64, "V": 72, "O": 80}
    srd = {"Q": 60, "K": 64, "V": 68, "O": 72, "S": 72}
    for m in "QKVO": a(f"s_load_dwordx2 s[{srd[m]}:{srd[m]+1}], s[0:1], {ptr[m]}")
    a("s_waitcnt lgkmcnt(0)")
    for m in "QKVO": a(f"s_mov_b32 s{srd[m]+2}, 4718592\ns_mov_b32 s{srd[m]+3}, 0x20000")
    cb = fbits((128 ** -0.5) * math.log2(math.e))
    a(f"s_mov_b32 s{S_C}, {cb}\ns_mov_b32 s{S_C+1}, {cb}")
    def issue(n):
        m, x = WM.order[n]; rs = WM.raw[n]
        for i in range(4):
            if m in "QKV": so = (64 * chunk_of(w, x) + 16 * i) * 8192; vo = DQ
            elif m == "O": so = (64 * x[1] + 16 * i) * 1152 + (8 * x[0] + 2 * w) * 32; vo = DO
            else: so = (32 * i) * 1152 + (32 + w) * 32; vo = DS_
            a(f"s_mov_b32 m0, {(misc if rs == 9 else base + rs * 4096) + i * 1024}")
            a(f"s_mov_b32 s{S_T0}, {so}")
            a.vm(f"buffer_load_dwordx4 v{vo}, s[{srd[m]}:{srd[m]+3}], s{S_T0} offen lds", f"u{n}")
    def consume(n):
        unit = WM.order[n]; m, x = unit; rs = WM.raw[n]
        sb = 0 if rs == 9 else rs * 4096; am = 1 if rs == 9 else 0
        a.wv(f"u{n}")
        for half in range(2):
            for jj in range(4):
                if m in "QK": ad, off = TQ, sb + (32 * (jj >> 1) + 4 * (jj & 1)) * 64 + 16 * half
                elif m == "V": ad, off = TV, sb + (32 * (jj >> 1) + 4 * (jj & 1)) * 64 + 32 * half
                elif m == "O": ad, off = TO, sb + half * 2048 + (8 * (jj >> 1) + 2 * (jj & 1)) * 64
                else: ad, off = TS, sb + half * 2048 + (8 * (jj >> 1) + 2 * (jj & 1)) * 32
                dst = v(40 + half * 8 + 2 * jj, 2) if (unit, half) in WM.lds else WM.regpair(unit, half, jj)
                a.ds(f"ds_read_b64_tr_b16 {dst}, v{ad+am} offset:{off}", "tr")
        a.wl0()
        if m == "Q":
            for half in range(2):
                t = WM.reg(unit, half); assert t[0] == "v"; b0 = int(t[2:t.index(":")])
                for j in range(8):
                    a(f"v_lshlrev_b32 v40, 16, v{b0+j}\nv_and_b32 v41, 0xffff0000, v{b0+j}\nv_pk_mul_f32 v[40:41], v[40:41], s[{S_C}:{S_C+1}]\nv_cvt_pk_bf16_f32 v{b0+j}, v40, v41")
        wrote = False
        for half in range(2):
            if (unit, half) in WM.lds:
                for q in range(2):
                    a.ds(f"ds_write_b128 v{AW}, {v(40+8*half+4*q,4)} offset:{WM.lds[(unit,half)] + q*1024}", "tw")
                wrote = True
        if wrote: a.wl0()
    for c in range(36):
        for n in range(36):
            if WM.issue_at[n] == c: issue(n)
        consume(c)
        if mid and c == P.get("midu", 5): mid(); a.vq = []
    a("s_barrier")
    a(f"""
    s_load_dwordx2 s[60:61], s[0:1], 48
    s_waitcnt lgkmcnt(0)
    s_mov_b32 s62, 9216
    s_mov_b32 s63, 0x20000
    v_and_b32 v{T}, 7, v{LANE}
    s_movk_i32 s{S_T1}, 1152
    v_lshrrev_b32 v{T+1}, 4, v{LANE}
    v_lshlrev_b32 v{T+1}, 5, v{T+1}
    v_mad_u32_u24 v{T}, v{T}, s{S_T1}, v{T+1}
    v_bfe_u32 v{T+1}, v{LANE}, 3, 1
    v_mov_b32 v{T+2}, 0x05040100
    v_mov_b32 v{T+3}, 0x07060302
    v_cmp_eq_u32 vcc, 1, v{T+1}
    v_cndmask_b32 v{T+2}, v{T+2}, v{T+3}, vcc
    """)
    for p, q in ((0, R0), (5, R1), (4, R2)):
        c = chunk_of(w, p)
        a.vm(f"buffer_load_dwordx4 v[64:67], v{T}, s[60:63], 0 offen offset:{c*128}", "m")
        a.vm(f"buffer_load_dwordx4 v[68:71], v{T}, s[60:63], 0 offen offset:{c*128+16}", "m")
        a.wv0()
        for j in range(4): a(f"v_perm_b32 v{q+j}, v{65+2*j}, v{64+2*j}, v{T+2}")
    Q1, Q2, Q3, Q4 = 36, 40, 44, 48
    a(f"""
    v_mov_b32 v{IDX}, 0x8888
    v_mov_b32 v{T}, 0xdddd
    v_cndmask_b32 v{IDX}, v{IDX}, v{T}, vcc
    v_and_b32 v{T}, 7, v{LANE}
    v_bfe_u32 v{T+1}, v{LANE}, 4, 1
    v_lshlrev_b32 v{T+1}, 2, v{T+1}
    v_sub_u32 v{T}, v{T}, v{T+1}
    v_and_b32 v{T+1}, 1, v{T}
    v_lshlrev_b32 v{T+1}, 4, v{T+1}
    v_mov_b32 v{T+2}, 0x3f80
    v_lshlrev_b32 v{T+2}, v{T+1}, v{T+2}
    v_ashrrev_i32 v{T}, 1, v{T}
    v_cmp_eq_u32 vcc, 0, v{T}
    v_cndmask_b32 v{TSEL}, 0, v{T+2}, vcc
    v_cmp_eq_u32 vcc, 1, v{T}
    v_cndmask_b32 v{TSEL+1}, 0, v{T+2}, vcc
    v_add_u32 v{MEMA}, {LMEM}, v{L16}
    v_bfe_u32 v{T}, v{L16}, 8, 1
    v_and_b32 v{T+1}, 0x70, v{L16}
    v_lshrrev_b32 v{SWA}, 5, v{L16}
    v_and_b32 v{SWA}, 0x18, v{SWA}
    v_lshl_add_u32 v{SWA}, v{T+1}, 1, v{SWA}
    v_add_u32 v{SWA}, {LSX + w*1040}, v{SWA}
    s_movk_i32 s{S_T1}, 9216
    v_lshrrev_b32 v{Q1}, 7, v{L16}
    v_mad_u32_u24 v{Q1}, v{Q1}, s{S_T1}, v{T+1}
    v_lshl_or_b32 v{Q1+1}, v{T}, 3, v{T+1}
    v_lshrrev_b32 v{T+2}, 9, v{L16}
    v_lshl_or_b32 v{Q1+1}, v{T+2}, 2, v{Q1+1}
    v_bfe_u32 v{T+3}, v{L16}, 7, 1
    v_lshl_or_b32 v{Q1+1}, v{T+3}, 31, v{Q1+1}
    v_and_b32 v{Q1+2}, 0x33f, v{L16}
    v_lshl_or_b32 v{Q1+2}, v{T+3}, 6, v{Q1+2}
    v_bfe_u32 v{T+4}, v{L16}, 6, 1
    v_lshl_or_b32 v{Q1+2}, v{T+4}, 7, v{Q1+2}
    v_bfe_u32 v{Q1+3}, v{L16}, 1, 8
    v_lshl_or_b32 v{Q1+3}, v{T+2}, 2, v{Q1+3}
    v_and_b32 v{T}, 16, v{L16}
    v_mov_b32 v{T+2}, 0x3f80
    v_lshlrev_b32 v{T+2}, v{T}, v{T+2}
    v_bfe_u32 v{T}, v{L16}, 5, 2
    """)
    a(f"v_bfe_u32 v{T}, v{L16}, 5, 3")
    for j in range(4): a(f"v_cmp_eq_u32 vcc, {j}, v{T}\nv_cndmask_b32 v{Q2+j}, 0, v{T+2}, vcc")
    for j in range(4): a(f"v_cmp_eq_u32 vcc, {j+4}, v{T}\nv_cndmask_b32 v{Q4+j}, 0, v{T+2}, vcc")
    a(f"""
    v_lshrrev_b32 v{T}, 8, v{L16}
    v_lshl_or_b32 v{T}, v{T}, 7, v{T+1}
    v_add_u32 v{Q3+1}, {LMEM + 4096}, v{T}
    v_lshl_add_u32 v{Q3}, v{T+3}, 3, v{Q3+1}
    v_lshl_add_u32 v{Q3+2}, v{T+3}, 9, v{Q3+1}
    v_lshrrev_b32 v{Q3+3}, 1, v{L16}
    """)
    if w == 0:
        for i, q in ((1, Q2), (2, Q3), (3, Q4)):
            a.ds(f"ds_write_b128 v{MEMA}, {v(q,4)} offset:{LST - LMEM + i*1024}", "st")
        a.wl0()
    a(f"""
    s_mov_b32 s{S_HI8}, 0xff00ff00
    s_mov_b32 s{S_HI8+1}, 0xff00ff00
    s_mov_b32 s{S_ONE}, 0x3e803e80
    s_mov_b32 s{S_ONE+1}, 0x3e803e80
    s_mov_b32 s{S_ONE+2}, 0x3f803f80
    s_mov_b32 s{S_ONE+3}, 0x3f803f80
    s_mov_b32 s{S_ZLO}, {fbits(2.0**-60)}
    s_mov_b32 s{S_ZHI}, {fbits(2.0**60)}
    s_mov_b32 s{S_STEP}, 0
    s_mov_b32 s{S_SPIN}, 0
    s_mov_b32 s{S_BSL}, 0
    s_mul_i32 s{S_KV}, s{S_H}, 8192
    s_add_u32 s{S_KV}, s{S_KV}, {KX + w*2048}
    s_add_u32 s{S_KV2}, s{S_KV}, {VX - KX}
    s_add_u32 s{S_PUB}, s{S_KV}, {KVM - KX}
    s_mul_i32 s{S_BA}, s{S_H}, 9216
    s_add_u32 s{S_BA}, s{S_BA}, {MBA}
    s_lshl_b32 s{S_T1}, s{S_H}, 7
    s_add_u32 s{S_BR}, s{S_T1}, {MBA + w*4096}
    s_add_u32 s{S_RHO}, s{S_T1}, {MBB + w*4096}
    s_mov_b32 s{S_ASL}, {MBA_SLOT}
    s_movk_i32 s{S_9216}, 9216
    """)
    if w == 2:
        a(f"s_cmp_ge_u32 s{S_H}, 8\ns_cselect_b32 s{S_T0}, 0x80000000, 0\ns_or_b32 s{S_RHO}, s{S_RHO}, s{S_T0}")
    a(f"s_add_u32 s{S_BCL}, s{S_RHO}, {3*MBB_SLOT}\ns_add_u32 s{S_BC2}, s{S_RHO}, {2*MBB_SLOT}")
    for r, memb, c in ((S_HST, 8 + w, chunk_of(w, 2)), (S_HS2, 12 + w, chunk_of(w, 6)), (S_HS3, 16, 8)):
        a(f"s_cmp_eq_u32 s{S_H}, {memb}\ns_cselect_b32 s{r}, 0, 0x80000000\ns_add_u32 s{r}, s{r}, {HIST - HIST_STRIDE + c*1024}")

def loop(a, w, P, sc, Lend):
    tag = f"c{w}{'s' if sc else 'f'}"
    psc = P.get("psc", "sc1")
    Ltop, Lfirst, Lout = f"L{tag}_top", f"L{tag}_first", f"L{tag}_out"
    BP, TMP = V0, V0 + 1
    sq_, vq_ = [], []
    def gap(*items):
        n0 = len(a.lines)
        for it in items:
            if it is None: continue
            it() if callable(it) else a(it)
        new = a.lines[n0:]
        room = (2 if any(x.startswith(("ds_", "buffer_store")) for x in new) else 3) - len(new)
        nv = 1 if (vq_ and room > 0) else 0
        while room - nv > 0 and sq_ and (len(a.lines) - n0) < 2 + (0 if nv else 1):
            a(sq_.pop(0)); room -= 1
        if nv: a(vq_.pop(0))
    def sm(d, A, B, *items):
        smf(a, d, A, B); gap(*items)
    def spin(k=0):
        if P.get("cnt"): a(f"s_add_u32 s{83+k}, s{83+k}, 1")
        a(f"s_add_u32 s{S_SPIN}, s{S_SPIN}, 1\ns_cmp_gt_u32 s{S_SPIN}, 400000\ns_cbranch_scc1 {Lend}")
    def rdW(unit, half, dst, q, tg):
        return lambda: a.ds(f"ds_read_b128 {v(dst+4*q,4)}, v{AW} offset:{WM.lds[(unit,half)] + q*1024}", tg)
    def rdA(p, q): return lambda: a.ds(f"ds_read_b128 {v(q,4)}, v{MEMA} offset:{chunk_of(w,p)*1024}", f"A{p}")
    def wl(*t): return lambda: a.wl(*t)
    def vm(txt, tg): return lambda: a.vm(txt, tg)
    Q = lambda p, h: WM.reg(("Q", p), h)
    K = lambda p, h: WM.reg(("K", p), h)
    Vw = lambda p, h: WM.reg(("V", p), h)
    NEG = V0 + 2
    RL, RS = V1 + 2, V1 + 3
    FILL = f"v_mov_b32 v{PFD}, v{PFD}"
    def warm(n):
        for _ in range(n): a(FILL + "\ns_nop 2")
    def chk(q, q2=None):
        a(f"v_max3_u32 v{TMP}, v{q}, v{q+1}, v{q+2}")
        if q2 is not None: a(f"v_max3_u32 v{TMP}, v{TMP}, v{q2}, v{q2+1}\nv_max3_u32 v{TMP}, v{TMP}, v{q2+2}, v{q2+3}")
        a(f"v_max_u32 v{TMP}, v{TMP}, v{q+3}\nv_cmp_eq_u32 vcc, -1, v{TMP}")
    def bld(q, i): a(f"buffer_load_dwordx4 {v(q,4)}, v{BP}, s[8:11], s{S_BP+i} offen sc1")
    C8 = LST - LMEM
    n8 = 1 if w == 3 else 0
    def lofs(p): return C8 if chunk_of(w, p) == 8 else chunk_of(w, p) * 1024
    def rdA(p, q): return lambda: a.ds(f"ds_read_b128 {v(q,4)}, v{MEMA} offset:{lofs(p)}", f"A{p}")
    a(f"v_mov_b32 v{BP}, v38\nv_mov_b32 v{RS}, v37")
    for i, (c, q) in enumerate(((chunk_of(w, 0), R0), (8, R1), (chunk_of(w, 4), R2))):
        a(f"s_mov_b32 s{S_BP+i}, {MBB + c*1024}")
        a(f"buffer_store_dwordx4 {v(q,4)}, v{BP}, s[8:11], s{S_BP+i} offen {sc}")
    for q in (QA, QB, VA, VB): zero(a, q)
    a.wl0(); a.wv0()
    a(".filler " + FILL)
    Lb, Lgo = f"L{tag}_pb", f"L{tag}_go"
    def chkm(q, m):
        a(f"v_max3_u32 v{TMP}, v{q}, v{q+1}, v{q+2}\nv_max_u32 v{TMP}, v{TMP}, v{q+3}\nv_cmp_eq_u32 s[{m}:{m+1}], -1, v{TMP}")
    def masked(m, txt): a(f"s_or_b64 exec, s[{m}:{m+1}], 1\n{txt}")
    def btx(q, i): return f"buffer_load_dwordx4 {v(q,4)}, v{BP}, s[8:11], s{S_BP+i} offen sc1"
    a.label(Ltop)
    if w < 2: warm(P.get("d2e" if w == 0 else "d2", 0))
    stamp(a, P, 8)
    bld(R0, 0)
    loadW(a, ("K", 0), 1, W0, "w0"); loadW(a, ("K", 1), 1, W1, "w1")
    zero(a, KA); zero(a, KB)
    a(f"v_mov_b32 v{NEG}, -1")
    warm(P.get("wb1", 10))
    a(f"s_waitcnt vmcnt(0)")
    a.label(Lgo)
    a.vq = []; a.lq = ["w0", "w0", "w1", "w1"]
    stamp(a, P, 0)
    sq_ += [f"s_mov_b32 s{S_T1}, s{S_BC2}", f"s_mov_b32 s{S_BC2}, s{S_BCL}"]
    sq_ += [f"s_xor_b32 s{S_ASL}, s{S_ASL}, {MBA_SLOT}", f"s_bfe_i32 s{S_TAG}, s{S_STEP}, 0x10001"]
    sq_ += [f"s_add_u32 s{S_BCL}, s{S_RHO}, s{S_BSL}", f"s_add_u32 s{S_BSL}, s{S_BSL}, {MBB_SLOT}",
            f"s_and_b32 s{S_BSL}, s{S_BSL}, {4*MBB_SLOT-1}", f"s_movk_i32 s{S_T2}, 1040", f"s_add_u32 s{S_RST}, s{S_RHO}, s{S_BSL}",
            f"s_add_u32 s{S_BP}, s{S_BSL}, {MBB + chunk_of(w, 0)*1024}"]
    def kw(p, q): return rdW(("K", p), 1, (W0, W1)[p & 1], q, ("w0", "w1")[p & 1])
    L8 = V1 + 2 - 0
    keep = sq_[:]; sq_.clear()
    vq_ += [f"v_max3_u32 v{TMP}, v{R0}, v{R0+1}, v{R0+2}", f"v_max_u32 v{TMP}, v{TMP}, v{R0+3}", f"v_cmp_eq_u32 vcc, -1, v{TMP}"]
    sm(QA, R0, Q(0, 0), lambda: a.ds(f"ds_write_b128 v{MEMA}, {v(R0,4)} offset:{lofs(0)}", "mw"))
    sm(QB, R0, Q(0, 1), vm(btx(R2, 2), "late"), vm(btx(L8, 1), "late") if n8 else None)
    sm(KA, R0, K(0, 0), wl("w0", "w1")); sm(KB, R0, v(W0, 8))
    smf(a, VA, R0, Vw(0, 0))
    a(f"s_cbranch_vccnz {Lb}")
    sq_ += keep
    sm(VB, R0, Vw(0, 1))
    a.wl("mw"); a("s_barrier")
    stamp(a, P, 1)
    rdA(1, R1)(); rdA(2, KX0)()
    if w < 3: a.vm(f"buffer_store_dword v{NEG}, v{RS}, s[8:11], s{S_T1} offen {sc}", "clr")
    a.wl("A1")
    def qk(p, A, g0=(), g1=(), g2=(), g3=()):
        b, t = ((W0, "w0"), (W1, "w1"))[p & 1]
        sm(QA, A, Q(p, 0), *g0); sm(QB, A, Q(p, 1), *g1); sm(KA, A, K(p, 0), *g2, wl(t)); sm(KB, A, v(b, 8), *g3)
    Ll, Llok = f"L{tag}_lp", f"L{tag}_lok"
    late_v = [f"v_max3_u32 v{TMP}, v{R2}, v{R2+1}, v{R2+2}"]
    if n8: late_v += [f"v_max3_u32 v{TMP}, v{TMP}, v{L8}, v{L8+1}", f"v_max3_u32 v{TMP}, v{TMP}, v{L8+2}, v{L8+3}"]
    late_v += [f"v_max_u32 v{TMP}, v{TMP}, v{R2+3}", f"v_cmp_eq_u32 vcc, -1, v{TMP}"]
    def late_br():
        a(f"s_cbranch_vccnz {Ll}"); a.label(Llok)
    def late_wr(): a.ds(f"ds_write_b128 v{MEMA}, {v(R2,4)} offset:{lofs(4)}", "mw2")
    def late_wr8(): a.ds(f"ds_write_b128 v{MEMA}, {v(L8,4)} offset:{C8}", "mw2")
    kvstep = 0 if P.get("nokv") else 32 * 8192
    ldk0 = vm(f"buffer_load_dwordx4 {v(KX0,4)}, v{L16}, s[8:11], s{S_KV} offen sc1", "kx")
    ldk1 = vm(f"buffer_load_dwordx4 {v(KX1,4)}, v{L16}, s[8:11], s{S_KV} offen offset:1024 sc1", "kx")
    ldv0 = vm(f"buffer_load_dwordx4 {v(V0+2,4)}, v{L16}, s[8:11], s{S_KV2} offen sc1", "vx")
    ldv1 = vm(f"buffer_load_dwordx4 {v(V1+2,4)}, v{L16}, s[8:11], s{S_KV2} offen offset:1024 sc1", "vx")
    qk(1, R1, g0=(kw(2, 0),), g1=(kw(2, 1),), g2=(rdA(3, KX1),), g3=(kw(3, 0), wl("A2")))
    vq_ += [f"v_and_b32 v{PFD}, 0x1f0, v{L16}", f"v_lshlrev_b32 v{PFD}, 2, v{PFD}", f"v_lshrrev_b32 v{TMP}, 9, v{L16}"]
    qk(2, KX0, g0=(kw(3, 1),), g3=(kw(4, 0), wl("A3")))
    assert not vq_
    stamp(a, P, 10)
    a(f"v_lshl_or_b32 v{PFD}, v{TMP}, 24, v{PFD}")
    vq_ += late_v
    if n8: a.wv("late"); a(vq_.pop(0)); a(vq_.pop(0))
    qk(3, KX1, g0=(lambda: a.wv("late"),), g1=(), g2=(), g3=(kw(4, 1), ldk0))
    assert not vq_
    smf(a, VA, R1, Vw(1, 0))
    late_br()
    stamp(a, P, 11)
    sm(QA, R2, Q(4, 0), late_wr, late_wr8 if n8 else None); sm(QB, R2, Q(4, 1)); sm(KA, R2, K(4, 0), ldk1, wl("w0"))
    sm(KB, R2, v(W0, 8), kw(5, 0)); sm(VA, R2, Vw(4, 0), kw(5, 1))
    stamp(a, P, 20)
    a.wl("mw2")
    stamp(a, P, 21)
    a("s_barrier")
    stamp(a, P, 9)
    sq_ += [f"s_add_u32 s{S_KV}, s{S_KV}, {kvstep}", f"s_add_u32 s{S_BP+2}, s{S_BSL}, {MBB + chunk_of(w, 4)*1024}",
            f"s_add_u32 s{S_BP+1}, s{S_BSL}, {MBB + 8*1024}"]
    SRA, SRA3 = BP, TMP
    rdA(5, R0)()
    sm(VB, R2, Vw(4, 1), rdA(7, R2), ldv0); sm(VB, R1, Vw(1, 1), rdA(6, R1))
    a.wl("A5")
    vq_ += [f"v_and_b32 v{SRA}, 0x70, v{L16}", f"v_lshlrev_b32 v{SRA}, 1, v{SRA}", f"v_lshrrev_b32 v{SRA3}, 8, v{L16}",
            f"v_mad_u32_u24 v{SRA3}, v{SRA3}, s{S_T2}, v{SRA}", f"v_add_u32 v{SRA3}, {LSX}, v{SRA3}",
            f"v_and_b32 v{SRA}, 0x80, v{L16}", f"v_lshl_add_u32 v{SRA}, v{SRA}, 1, v{SRA3}"]
    sq_ += [f"s_add_u32 s{S_AST1}, s{S_BA}, s{S_ASL}", f"s_add_u32 s{S_AST}, s{S_AST1}, {2*w*256}", f"s_add_u32 s{S_AST2}, s{S_AST1}, {2*w*256 + 4096}",
            f"s_add_u32 s{S_AST1}, s{S_AST1}, {(32+w)*256}"]
    if w < 3:
        sq_ += [f"s_add_u32 s{S_RLD}, s{S_BR}, s{S_ASL}"] + [f"s_add_u32 s{S_RLD+i}, s{S_RLD}, {i*8*9216}" for i in (1, 2, 3)]
    pf = vm(f"buffer_load_dword v{PFD}, v{PFD}, s[8:11], s{S_KV} offen sc1", "pf") if not P.get("nopf") else None
    qk(5, R0, g0=(kw(6, 0),), g1=(kw(6, 1),), g2=(ldv1,), g3=(kw(7, 0),))
    sm(VA, R0, Vw(5, 0), kw(7, 1)); sm(VB, R0, Vw(5, 1), rdA(8, R0), wl("A6"))
    sq_ += [f"s_add_u32 s{S_KV2}, s{S_KV2}, {kvstep}"]
    if P.get("full"): sq_ += [f"s_add_u32 s{r}, s{r}, {HIST_STRIDE}" for r in (S_HST, S_HS2) + ((S_HS3,) if w == 0 else ())]
    qk(6, R1, g0=(pf,), g3=(kw(8, 0), wl("A7")))
    qk(7, R2, g0=(kw(8, 1),), g3=(rdW(("V", 7), 1, W1, 0, "w1"), wl("A8")))
    qk(8, R0, g0=(rdW(("V", 7), 1, W1, 1, "w1"),), g3=(rdW(("V", 8), 1, W0, 0, "w0"),))
    assert not sq_ and not vq_
    stamp(a, P, 2)
    def tm(d, A): a(f"v_mfma_f32_16x16x16_bf16 {v(d,4)}, {v(A,2)}, {v(TSEL,2)}, 0")
    def m32(d, A, B, C="0"): a(f"v_mfma_f32_16x16x32_bf16 {v(d,4)}, {v(A,4)}, {v(B,4)}, {C}")
    cvt(a, QA, QA, QA + 1); cvt(a, QA + 1, QA + 2, QA + 3); cvt(a, QA + 2, QB, QB + 1); cvt(a, QA + 3, QB + 2, QB + 3)
    cvt(a, KA, KA, KA + 1); cvt(a, KA + 1, KA + 2, KA + 3)
    tm(QB, QA); rdW(("V", 8), 1, W0, 1, "w0")()
    cvt(a, KA + 2, KB, KB + 1); cvt(a, KA + 3, KB + 2, KB + 3)
    tm(KB, QA + 2)
    a.wv("kx")
    tm(QA, KA)
    cvt(a, QB, QB, QB + 1); cvt(a, QB + 1, QB + 2, QB + 3)
    tm(R1, KA + 2)
    cvt(a, QB + 2, KB, KB + 1); cvt(a, QB + 3, KB + 2, KB + 3)
    m32(KB, KX0, QB); rdA(2, KX0)()
    cvt(a, QA, QA, QA + 1); cvt(a, QA + 1, QA + 2, QA + 3)
    m32(KA, KX1, QB); rdA(3, KX1)()
    cvt(a, QA + 2, R1, R1 + 1); cvt(a, QA + 3, R1 + 2, R1 + 3)
    m32(R1, QA, QB)
    if P.get("pub"):
        a.vm(f"buffer_store_dwordx4 {v(QA,4)}, v{L16}, s[8:11], s{S_PUB} offen {psc}", "pub")
    a.wl("w0", "w1")
    cvt(a, KB, KB, KB + 1); cvt(a, KB + 1, KB + 2, KB + 3); cvt(a, KA, KA, KA + 1); cvt(a, KA + 1, KA + 2, KA + 3)
    def sw(q, off): return lambda: a.ds(f"ds_write_b64 v{SWA}, {v(q,2)} offset:{off}", "sw")
    def stash(q, i, tg): return lambda: a.ds(f"ds_read_b128 {v(q,4)}, v{MEMA} offset:{LST - LMEM + i*1024}", tg)
    SLO, SHI = QA, QB
    U00 = ("O", (0, 0))
    sm(VA, R0, Vw(8, 0), sw(KB, 0), sw(KA, 256))
    cvt(a, R1, R1, R1 + 1); cvt(a, R1 + 1, R1 + 2, R1 + 3)
    sm(VB, R0, v(W0, 8), sw(R1, 512))
    sm(VB, R2, v(W1, 8), stash(SLO, 1, "sel"))
    sm(VA, R2, Vw(7, 0), rdA(6, R2), wl("A2", "A3"))
    full = P.get("full") and not P.get("nohist")
    def pubst(q, r): return vm(f"buffer_store_dwordx4 {v(q,4)}, v{L16}, s[8:11], s{r} offen sc1", "pub") if full else None
    sm(VA, KX1, Vw(3, 0), stash(SHI, 3, "sel"), rdA(5, R1) if (full and w == 0) else None)
    sm(VB, KX1, Vw(3, 1), pubst(KX0, S_HST)); a.wl("sw")
    a("s_barrier")
    stamp(a, P, 3)
    B1, B2, B3, X, M, ON = KX1, KB, KA, KX0, R1, KA
    Bq = VB
    E1, E2, F1, F2, ZD, AQ = QA, QB, VA, KX1, KB, R2
    SQ = V1 + 2
    a.ds(f"ds_read_b128 {v(B1,4)}, v{SRA}", "b1")
    sm(VA, KX0, Vw(2, 0), lambda: a.ds(f"ds_read_b128 {v(B2,4)}, v{SRA} offset:16", "b2"))
    sm(VB, KX0, Vw(2, 1), lambda: a.ds(f"ds_read_b128 {v(B3,4)}, v{SRA3} offset:512", "b3"), wl("A6"))
    vq_ += [f"v_mov_b64 {v(R0,2)}, 0"]
    sm(VA, R2, Vw(6, 0), rdW(U00, 0, W0, 0, "w0"))
    if full:
        pubst(R2, S_HS2)()
        if w == 0: a.wl("A5"); pubst(R1, S_HS3)()
    sm(VB, R2, Vw(6, 1), rdW(U00, 0, W0, 1, "w0"), wl("b1", "b2"))
    stamp(a, P, 15)
    m32(X, SLO, B1)
    rdW(U00, 1, W1, 0, "w1")()
    m32(X, SHI, B2, v(X, 4))
    a.wl("b3")
    cvt(a, V0, VA, VA + 1)
    m32(M, SLO, B3)
    cvt(a, V0 + 1, VA + 2, VA + 3); cvt(a, V1, VB, VB + 1)
    m32(M, SHI, B3, v(M, 4))
    rdW(U00, 1, W1, 1, "w1")()
    stamp(a, P, 12)
    for r in range(4): a(f"v_exp_f32 v{KX1+r}, v{X+r}")
    cvt(a, V1 + 1, VB + 2, VB + 3)
    cvt(a, Bq + 2, KX1, KX1 + 1); cvt(a, Bq + 3, KX1 + 2, KX1 + 3)
    a(f"v_exp_f32 v{KB}, v{M}")
    a.wv("vx")
    m32(E2, V0 + 4, Bq + 2)
    stash(AQ, 2, "aq")()
    a(f"v_exp_f32 v{KB+1}, v{M+1}")
    m32(F2, V1 + 4, Bq + 2)
    if P.get("pub"): a(f"s_cmp_eq_u32 s{S_STEP}, 63")
    for r in range(2, 4): a(f"v_exp_f32 v{KB+r}, v{M+r}")
    cvt(a, Bq, KB, KB + 1); cvt(a, Bq + 1, KB + 2, KB + 3)
    a(f"v_mov_b64 {v(ON,2)}, s[{S_ONE}:{S_ONE+1}]\nv_mov_b64 {v(ON+2,2)}, s[{S_ONE+2}:{S_ONE+3}]")
    stamp(a, P, 13)
    m32(E1, V0, Bq)
    if P.get("pub"): a.vm(f"buffer_store_dwordx2 {v(V0,2)}, v{L16}, s[8:11], s{S_PUB} offen offset:1024 {psc}", "pub")
    m32(ZD, ON, Bq)
    if P.get("pub"): a.vm(f"buffer_store_dwordx2 {v(V1,2)}, v{L16}, s[8:11], s{S_PUB} offen offset:1032 {psc}", "pub")
    if P.get("pub"): a(f"s_cbranch_scc1 {Lout}")
    m32(F1, V1, Bq)
    a.wl("aq")
    Lslow, Lcont = f"L{tag}_slow", f"L{tag}_cont"
    def finish():
        for r in range(4): a(f"v_add_f32_dpp v{E1+r}, v{E2+r}, v{E1+r} row_ror:8 row_mask:0xf bank_mask:0x3")
        a(f"v_add_f32_dpp v{ZD}, v{ZD}, v{ZD} row_ror:8 row_mask:0xf bank_mask:0xf")
        a(f"v_rcp_f32 v{ZD+2}, v{ZD}")
        a(f"v_cmp_nlt_f32 vcc, s{S_ZLO}, v{ZD}")
        a(f"v_cmp_ngt_f32 s[{S_T0}:{S_T0+1}], s{S_ZHI}, v{ZD}")
        for r in range(4): a(f"v_add_f32_dpp v{E1+r}, v{F1+r}, v{F2+r} row_ror:8 row_mask:0xf bank_mask:0xc")
        a(f"v_pk_mul_f32 {v(E1,2)}, {v(E1,2)}, {v(ZD+2,2)} op_sel_hi:[1,0]")
        a(f"v_pk_mul_f32 {v(E1+2,2)}, {v(E1+2,2)}, {v(ZD+2,2)} op_sel_hi:[1,0]")
        cvt(a, E1, E1, E1 + 1); cvt(a, E1 + 1, E1 + 2, E1 + 3)
        a.ds(f"ds_write_b64 v{AQ}, {v(E1,2)} offset:{w*512}", "ow")
    finish()
    stamp(a, P, 14)
    DS_, D = KB, [R1, KA, KX0, KX1]
    for q in (DS_, D[3], D[1]): zero(a, q)
    a(f"s_or_b64 vcc, vcc, s[{S_T0}:{S_T0+1}]")
    a(f"s_cbranch_scc1 {Lslow}")
    a.label(Lcont)
    zero(a, D[0])
    BPs, AAST1, AAST = SQ + 2, SQ + 3, AQ + 3
    stamp(a, P, 18)
    a.wl("ow")
    stamp(a, P, 19)
    a("s_barrier")
    stamp(a, P, 4)
    AS = [V0, V0 + 4]; AD = [QA, QB, VA, VB]
    for k in range(4): a.ds(f"ds_read_b128 {v(AD[k],4)}, v{AQ+1} offset:{k*512}", f"ad{k}")
    BPs, AAST1, AAST = SQ + 2, SQ + 3, AQ + 3
    RSEL, RD = W1, W0
    loadW(a, ("O", (1, 1)), 1, V0, "w2")
    if P.get("pub"): a(f"s_add_u32 s{S_PUB}, s{S_PUB}, {32*8192}")
    warm(P.get("wo2", 0))
    def ow(p, k):
        unit = ("O", (p, k >> 1)); half = k & 1
        if (p, k) == (2, 3): return v(W1, 8)
        if (p, k) == (1, 3): return v(V0, 8)
        return v((W0, W1)[half], 8) if unit in FULL_RES else WM.reg(unit, half)
    def o(p, k, *items): sm(D[p], AD[k], ow(p, k), *items)
    def st2(p):
        so = S_AST if p < 2 else S_AST2
        return f"buffer_store_dwordx2 {v(D[p],2)}, v{AAST}, s[8:11], s{so} offen offset:{(p&1)*2048} {sc}"
    def c2(p): return [f"v_cvt_pk_bf16_f32 v{D[p]}, v{D[p]}, v{D[p]+1}", f"v_cvt_pk_bf16_f32 v{D[p]+1}, v{D[p]+2}, v{D[p]+3}",
                       f"v_bfi_b32 v{D[p]}, 1, s{S_TAG}, v{D[p]}"]
    def ras(u): return lambda: a.ds(f"ds_read_b128 {v(AS[u],4)}, v{AQ+2} offset:{u*1024}", "as")
    U11, U21, U31 = ("O", (1, 1)), ("O", (2, 1)), ("O", (3, 1))
    a.wl("ad0")
    stamp(a, P, 16)
    vq_ += [f"v_lshrrev_b32 v{BPs}, 9, v{L16}"]
    o(0, 0, wl("ad1"))
    o(0, 1, rdW(U11, 0, W0, 0, "w0"), wl("ad2"))
    o(0, 2, rdW(U11, 0, W0, 1, "w0"), wl("ad3"))
    vq_ += [f"v_mov_b64 {v(D[2],2)}, 0", f"v_mov_b64 {v(D[2]+2,2)}, 0"]
    o(0, 3, rdW(U21, 1, W1, 0, "w1"))
    o(1, 0, rdW(U21, 1, W1, 1, "w1"))
    vq_ += c2(0)
    o(1, 1, wl("w0"))
    o(1, 2, rdW(U31, 0, W0, 0, "w0"))
    o(1, 3, ras(0))
    o(2, 0, st2(0), ras(1))
    vq_ += c2(1)
    o(2, 1, rdW(U31, 0, W0, 1, "w0"))
    o(2, 2, wl("w1"))
    o(2, 3, wl("as"))
    sm(DS_, AS[0], WM.reg(("S", 0), 0), st2(1), rdW(U31, 1, W1, 0, "w1"))
    vq_ += c2(2)
    sm(DS_, AS[1], WM.reg(("S", 0), 1), rdW(U31, 1, W1, 1, "w1"))
    o(3, 0)
    o(3, 1, wl("w0"))
    vq_ += [f"v_permlane32_swap_b32 v{DS_}, v{DS_+2}", f"v_permlane32_swap_b32 v{DS_+1}, v{DS_+3}"]
    o(3, 2, st2(2)); a.wl("w1")
    o(3, 3, stash(RSEL, 1, "rs") if w < 3 else None)
    stamp(a, P, 17)
    assert not vq_
    a(f"v_and_b32 v{AAST1}, 0xff, v{AAST}\nv_lshl_or_b32 v{AAST1}, v{BPs}, 2, v{AAST1}")
    a(f"v_add_f32 v{DS_}, v{DS_}, v{DS_+2}\nv_add_f32 v{DS_+1}, v{DS_+1}, v{DS_+3}\nv_cvt_pk_bf16_f32 v{DS_}, v{DS_}, v{DS_+1}\nv_bfi_b32 v{DS_}, 1, s{S_TAG}, v{DS_}")
    a(f"buffer_store_dword v{DS_}, v{AAST1}, s[8:11], s{S_AST1} offen {sc}")
    assert not vq_ and not sq_
    LD = [R0, R1, KX0, KX1]
    early = (w == 0)
    Lnr = f"L{tag}_nored"
    def addr_rest():
        a(f"""
        v_lshl_or_b32 v{RS}, v{BPs}, 2, v{RS}
        v_bfe_u32 v{TMP}, v{L16}, 8, 1
        v_lshl_or_b32 v{RS}, v{TMP}, 3, v{RS}
        v_bfe_u32 v{TMP}, v{L16}, 7, 1
        v_lshl_or_b32 v{RS}, v{TMP}, 31, v{RS}
        v_and_b32 v{BP}, 0x33f, v{L16}
        v_lshl_or_b32 v{BP}, v{TMP}, 6, v{BP}
        v_bfe_u32 v{TMP}, v{L16}, 6, 1
        v_lshl_or_b32 v{BP}, v{TMP}, 7, v{BP}
        """)
    for x in c2(3): a(x)
    a(st2(3))
    stamp(a, P, 5)
    def rtx(i): return f"buffer_load_dwordx4 {v(LD[i],4)}, v{RL}, s[8:11], s{S_RLD+i} offen sc1"
    CK = V0 + 4
    def tagchk(i):
        q = LD[i]
        if w == 2:
            a(f"v_bitop3_b32 v{CK+i}, v{q}, v{q+1}, s{S_TAG} bitop3:0x81\nv_bitop3_b32 v{TMP}, v{q+2}, v{q+3}, s{S_TAG} bitop3:0x81\nv_and_b32 v{CK+i}, v{CK+i}, v{TMP}")
        else:
            a(f"v_bitop3_b32 v{CK+i}, v{q}, v{q+2}, s{S_TAG} bitop3:0x81")
    def tagmask(i): a(f"v_and_b32 v{TMP}, 1, v{CK+i}\nv_cmp_eq_u32 s[{S_MK+2*i}:{S_MK+2*i+1}], 0, v{TMP}")
    def tagall(): a(f"v_bitop3_b32 v{TMP}, v{CK}, v{CK+1}, v{CK+2} bitop3:0x80\nv_bitop3_b32 v{TMP}, v{TMP}, v{CK+3}, 1 bitop3:0x80\nv_cmp_eq_u32 vcc, 0, v{TMP}")
    def rre():
        for i in range(4): masked(S_MK + 2 * i, rtx(i))
        a("s_mov_b64 exec, -1")
    tailz = [QA, QB, VA, VB]
    if w < 3:
        if w == 2: a(f"s_cmp_ge_u32 s{S_H}, 8\ns_cbranch_scc1 {Lnr}")
        a(f"v_lshrrev_b32 v{RL}, 7, v{L16}\nv_and_b32 v{RS}, 0x70, v{L16}\nv_mad_u32_u24 v{RL}, v{RL}, s{S_9216}, v{RS}")
        warm(P.get("d1e" if early else "d1", 0))
        for i in range(4): a(rtx(i))
        for q in tailz: zero(a, q)
        addr_rest()
        warm(P.get("wa1", 7))
        a.wl("rs")
        for i in range(4):
            a(f"s_waitcnt vmcnt({3-i})")
            m32(RD, LD[i], RSEL, "0" if i == 0 else v(RD, 4))
            tagchk(i)
        def rfin():
            tagall()
            a(f"""
            v_permlane32_swap_b32 v{RD}, v{RD+2}
            v_permlane32_swap_b32 v{RD+1}, v{RD+3}
            v_pk_add_f32 {v(RD,2)}, {v(RD,2)}, {v(RD+2,2)}
            v_cvt_pk_bf16_f32 v{RD}, v{RD}, v{RD+1}
            """)
        rfin()
        a(f"s_cbranch_vccnz L{tag}_rf")
        a.label(f"L{tag}_rn")
        a(f"buffer_store_dword v{RD}, v{RS}, s[8:11], s{S_RST} offen {sc}")
        stamp(a, P, 6)
        if w == 2:
            a(f"s_branch L{tag}_tail")
            a.label(Lnr)
    if w >= 2:
        for q in tailz: zero(a, q)
        addr_rest()
        nw = P.get("d3", 30)
        if w == 3 and P.get("full"):
            Lk_ = f"L{tag}_nk"
            a(f"""
            s_add_u32 s{S_T0}, s{S_STEP}, 2
            s_and_b32 s{S_T2}, s{S_T0}, 71
            s_cbranch_scc1 {Lk_}
            s_lshr_b32 s{S_T0}, s{S_T0}, 1
            v_mov_b32 v{R2}, s{S_T0}
            {Lk_}w:
            global_load_dword v{R2+1}, v{R2}, s[{S_DBG}:{S_DBG+1}] offset:{D_KV*4} sc1
            """)
            spin()
            a(f"""
            s_waitcnt vmcnt(0)
            v_cmp_gt_u32 vcc, 32, v{R2+1}
            s_cbranch_vccnz {Lk_}w
            {Lk_}:
            """)
        warm(nw)
        if w == 3: stamp(a, P, 6)
        a.label(f"L{tag}_tail")
    a.lq = []
    a(f"s_add_u32 s{S_STEP}, s{S_STEP}, 1")
    stamp(a, P, 7)
    if P.get("stamp"):
        a.wl0()
        if "only" in P and not P.get("noacc"):
            i, j = 0, 1
            a(f"s_sub_u32 s{S_T0}, s{S_TM+2*j}, s{S_TM+2*i}\ns_add_u32 s80, s80, s{S_T0}")
        for i in range(6 if "only" not in P else 0):
            a(f"s_sub_u32 s{S_T0}, s{S_TM+2*i+2}, s{S_TM+2*i}\ns_add_u32 s{80+i}, s{80+i}, s{S_T0}")
        Lns = f"L{tag}_ns"
        a(f"s_cmp_lg_u32 s{S_STEP}, 31\ns_cbranch_scc1 {Lns}")
        for i in range(8): a(f"s_mov_b32 s{92+i}, s{S_TM+2*i}")
        a.label(Lns)
    if P.get("pub"): a(f"s_branch {Ltop}")
    else: a(f"s_cmp_lt_u32 s{S_STEP}, 63\ns_cbranch_scc1 {Ltop}\ns_branch {Lout}")
    if w < 3:
        a.label(f"L{tag}_rf")
        for i in range(4): tagmask(i)
        rre()
        warm(P.get("wr1", 4))
        a.label(f"L{tag}_rg")
        rre(); spin(1)
        for i in range(4):
            a(f"s_waitcnt vmcnt({7-i})")
            tagchk(i)
            m32(RD, LD[i], RSEL, "0" if i == 0 else v(RD, 4))
            tagmask(i)
        rfin()
        a(f"s_cbranch_vccnz L{tag}_rg\ns_branch L{tag}_rn")
    a.label(Lb)
    a(f"s_mov_b64 s[{S_MK}:{S_MK+1}], vcc")
    masked(S_MK, btx(R0, 0))
    a("s_mov_b64 exec, -1")
    for q in (QA, QB, KA, KB, VA): zero(a, q)
    warm(P.get("wb2", 3))
    a.label(Lb + "2")
    masked(S_MK, btx(R0, 0))
    a("s_mov_b64 exec, -1")
    spin()
    warm(P.get("wb3", 3))
    a("s_waitcnt vmcnt(1)")
    chkm(R0, S_MK)
    a(f"s_cmp_lg_u64 s[{S_MK}:{S_MK+1}], 0")
    a(f"s_cbranch_scc1 {Lb}2\ns_branch {Lgo}")
    a.label(Ll)
    a(btx(R2, 2))
    if n8: a(btx(L8, 1))
    spin(2)
    a("s_waitcnt vmcnt(0)")
    for x in late_v: a(x)
    a(f"s_cbranch_vccnz {Ll}\ns_branch {Llok}")
    a.label(Lslow)
    t0, t1 = E1, E1 + 1
    a(f"""
    v_max3_f32 v{t0}, v{X}, v{X+1}, v{X+2}
    v_max3_f32 v{t1}, v{X+3}, v{M}, v{M+1}
    v_max3_f32 v{t0}, v{t0}, v{M+2}, v{M+3}
    v_max_f32 v{t0}, v{t0}, v{t1}
    v_max_f32_dpp v{t0}, v{t0}, v{t0} row_ror:8 row_mask:0xf bank_mask:0xf
    v_mov_b32 v{t1}, v{t0}
    v_permlane16_swap_b32 v{t0}, v{t1}
    v_max_f32 v{t0}, v{t0}, v{t1}
    v_mov_b32 v{t1}, v{t0}
    v_permlane32_swap_b32 v{t0}, v{t1}
    v_max_f32 v{t0}, v{t0}, v{t1}
    """)
    for q in (X, M):
        for r in range(4): a(f"v_sub_f32 v{q+r}, v{q+r}, v{t0}\nv_exp_f32 v{q+r}, v{q+r}")
    cvt(a, Bq, M, M + 1); cvt(a, Bq + 1, M + 2, M + 3); cvt(a, Bq + 2, X, X + 1); cvt(a, Bq + 3, X + 2, X + 3)
    a(f"v_mov_b64 {v(QA,2)}, 0")
    a(f"v_mov_b64 {v(ON,2)}, s[{S_ONE}:{S_ONE+1}]\nv_mov_b64 {v(ON+2,2)}, s[{S_ONE+2}:{S_ONE+3}]")
    m32(E2, V0 + 4, Bq + 2); m32(F2, V1 + 4, Bq + 2)
    m32(E1, V0, Bq); m32(ZD, ON, Bq); m32(F1, V1, Bq)
    finish()
    for q in (DS_, D[3], D[1]): zero(a, q)
    a(f"s_branch {Lcont}")
    a(".filler")
    a.label(Lout)
    a.vq = []; a.lq = []
    if P.get("full"):
        if w < 3:
            a(f"""
            s_sub_u32 s{S_T0}, s{S_RHO}, {MBB}
            s_and_b32 s{S_T1}, s{S_T0}, 0x80
            s_lshr_b32 s{S_T2}, s{S_T1}, 1
            s_sub_u32 s{S_T0}, s{S_T0}, s{S_T2}
            s_add_u32 s{S_T0}, s{S_T0}, {HIST + 63*HIST_STRIDE}
            v_and_b32 v{TMP}, 64, v{RS}
            v_add_u32 v{RS}, v{RS}, v{TMP}
            """)
            a(f"buffer_store_dword v{RD}, v{RS}, s[8:11], s{S_T0} offen sc1")
        a("s_waitcnt vmcnt(0)")
    else:
        a("s_waitcnt vmcnt(0) lgkmcnt(0)\ns_barrier")
```

```python
from asmlib import *
from layout import *
import math, struct
def fbits(x): return struct.unpack("<I", struct.pack("<f", x))[0]

S_W = 21
G_RB, G_CB, G_MAT = 30, 31, 32
G_XS, G_WS = 36, 40
G_T0, G_T1, G_IT, G_XO, G_WO, G_OUT = 44, 45, 46, 47, 48, 49
G_C = 50
L16 = 0
XD, WD, XR, WR, OA = 1, 2, 4, 6, 8
FX, FW = 16, 48
STG = 65536

def tile(a, tag, tl=None, pre_epi=None):
    T = 10
    a(f"""
    s_load_dwordx2 s[{G_XS}:{G_XS+1}], s[0:1], 40
    s_cmp_eq_u32 s{G_MAT}, 0
    s_cselect_b32 s{G_T0}, 64, 72
    s_cmp_eq_u32 s{G_MAT}, 2
    s_cselect_b32 s{G_T0}, 56, s{G_T0}
    s_load_dwordx2 s[{G_WS}:{G_WS+1}], s[0:1], s{G_T0}
    v_lshrrev_b32 v{T}, 4, v{L16}
    v_lshrrev_b32 v{T+1}, 3, v{T}
    v_and_b32 v{T+2}, 7, v{T}
    v_xor_b32 v{T+2}, v{T+2}, v{T+1}
    v_lshlrev_b32 v{T+2}, 4, v{T+2}
    s_movk_i32 s{G_T1}, 1152
    v_mad_u32_u24 v{XD}, v{T+1}, s{G_T1}, v{T+2}
    v_lshrrev_b32 v{T+1}, 5, v{T}
    v_and_b32 v{T+2}, 31, v{T}
    v_lshlrev_b32 v{T+3}, 2, v{T+1}
    v_xor_b32 v{T+2}, v{T+2}, v{T+3}
    v_lshlrev_b32 v{T+2}, 4, v{T+2}
    v_lshl_add_u32 v{WD}, v{T+1}, 13, v{T+2}
    v_xor_b32 v{WD+1}, 128, v{WD}
    s_lshr_b32 s{G_T0}, s{S_W}, 1
    s_lshl_b32 s{G_T0}, s{G_T0}, 14
    v_and_b32 v{T+1}, 31, v{T}
    v_lshrrev_b32 v{T+2}, 5, v{T}
    v_and_b32 v{T+3}, 7, v{T}
    v_xor_b32 v{T+3}, v{T+3}, v{T+2}
    v_lshlrev_b32 v{T+3}, 4, v{T+3}
    v_lshl_add_u32 v{XR}, v{T+1}, 7, v{T+3}
    v_add_u32 v{XR}, s{G_T0}, v{XR}
    v_bfe_u32 v{T+1}, v{T}, 2, 2
    v_lshl_add_u32 v{T+3}, v{T+2}, 3, v{T+1}
    v_lshlrev_b32 v{T+3}, 9, v{T+3}
    v_bfe_u32 v{T+4}, v{T}, 4, 1
    v_and_b32 v{T+5}, 3, v{T}
    v_lshlrev_b32 v{T+5}, 3, v{T+5}
    v_lshl_or_b32 v{T+5}, v{T+4}, 5, v{T+5}
    v_lshl_or_b32 v{T+5}, v{T+1}, 6, v{T+5}
    v_add_u32 v{WR}, v{T+3}, v{T+5}
    s_and_b32 s{G_T0}, s{S_W}, 1
    s_lshl_b32 s{G_T0}, s{G_T0}, 8
    s_add_u32 s{G_T0}, s{G_T0}, 32768
    v_add_u32 v{WR}, s{G_T0}, v{WR}
    s_waitcnt lgkmcnt(0)
    s_mov_b32 s{G_XS+2}, 2359296
    s_mov_b32 s{G_XS+3}, 0x20000
    s_mov_b32 s{G_WS+2}, 4718592
    s_mov_b32 s{G_WS+3}, 0x20000
    s_lshl_b32 s{G_XO}, s{G_RB}, 8
    s_lshl_b32 s{G_T0}, s{S_W}, 6
    s_add_u32 s{G_XO}, s{G_XO}, s{G_T0}
    s_mul_i32 s{G_XO}, s{G_XO}, 1152
    s_lshl_b32 s{G_WO}, s{S_W}, 17
    s_lshl_b32 s{G_T0}, s{G_CB}, 9
    s_add_u32 s{G_WO}, s{G_WO}, s{G_T0}
    s_lshl_b32 s{G_OUT}, s{S_W}, 13
    """)
    XRk = [XR, XR + 1, 12, 13]; WRb = [WR, WR + 1, 14, 15]
    for kk in range(1, 4): a(f"v_xor_b32 v{XRk[kk]}, {kk*32}, v{XR}")
    for b in range(1, 4): a(f"v_xor_b32 v{WRb[b]}, {b*64}, v{WR}")
    def dma_items(st):
        it = []
        for i in range(8):
            it.append(f"s_add_u32 m0, s{G_OUT}, {st*STG + i*1024}\ns_add_u32 s{G_T0}, s{G_XO}, {i*8*1152}\n"
                      f"buffer_load_dwordx4 v{XD}, s[{G_XS}:{G_XS+3}], s{G_T0} offen lds")
            it.append(f"s_add_u32 m0, s{G_OUT}, {st*STG + 32768 + i*1024}\ns_add_u32 s{G_T0}, s{G_WO}, {i*2*8192}\n"
                      f"buffer_load_dwordx4 v{WD + (i & 1)}, s[{G_WS}:{G_WS+3}], s{G_T0} offen lds")
        return it
    adv = f"s_add_u32 s{G_XO}, s{G_XO}, 128\ns_add_u32 s{G_WO}, s{G_WO}, {64*8192}"
    def read_items(kk, buf):
        it = []
        for i in range(4):
            it.append(f"ds_read_b128 {v(FX + 16*buf + 4*i, 4)}, v{XRk[kk]} offset:{i*4096}")
            for hf in range(2):
                it.append(f"ds_read_b64_tr_b16 {v(FW + 16*buf + 4*i + 2*hf, 2)}, v{WRb[i]} offset:{(kk*16 + 4*hf)*512}")
        return it
    def kstep(buf, swap, rd, dm):
        order = sorted([(i, j) for i in range(4) for j in range(4)], key=lambda t: (max(t), t))
        for n, (i, j) in enumerate(order):
            acc = ag((i * 4 + j) * 16, 16)
            w_, x_ = v(FW + 16*buf + 4*i, 4), v(FX + 16*buf + 4*j, 4)
            A, B = (x_, w_) if swap else (w_, x_)
            a(f"v_mfma_f32_32x32x16_bf16 {acc}, {A}, {B}, {acc}")
            if rd and n < 12: a.ds(rd.pop(0), f"f{buf ^ 1}")
            if dm and n % 2 == 1: a(dm.pop(0))
    a(f"""
    v_lshrrev_b32 v{T}, 4, v{L16}
    v_lshrrev_b32 v{T+1}, 3, v{T}
    v_and_b32 v{T}, 7, v{T}
    v_lshlrev_b32 v{T}, 6, v{T}
    v_lshl_add_u32 v16, v{T+1}, 13, v{T}
    v_lshlrev_b32 v17, 2, v{L16}
    s_and_b32 s{G_C}, s{G_RB}, 3
    s_mul_i32 s{G_C}, s{G_C}, 144
    s_mul_i32 s{G_C+1}, s{S_W}, 36
    s_add_u32 s{G_C}, s{G_C}, s{G_C+1}
    s_lshl_b32 s{G_C}, s{G_C}, 13
    s_lshl_b32 s{G_C+1}, s{G_CB}, 9
    s_add_u32 s{G_C}, s{G_C}, s{G_C+1}
    s_lshl_b32 s{G_C+1}, s{G_RB}, 3
    s_and_b32 s{G_IT}, s{G_CB}, 7
    s_add_u32 s{G_C+1}, s{G_C+1}, s{G_IT}
    s_lshl_b32 s{G_C+1}, s{G_C+1}, 2
    s_add_u32 s{G_C+1}, s{G_C+1}, s{S_W}
    s_mul_i32 s{G_C+1}, s{G_C+1}, 9216
    """)
    for x in dma_items(0): a(x)
    for i in range(5):
        a(f"buffer_load_dword v18, v16, s[{G_WS}:{G_WS+3}], s{G_C} offen\ns_add_u32 s{G_C}, s{G_C}, {8*8192 if i < 3 else 4*8192}")
    for i in range(3):
        a(f"buffer_load_dword v18, v17, s[{G_XS}:{G_XS+3}], s{G_C+1} offen\ns_add_u32 s{G_C+1}, s{G_C+1}, {4096 if i < 1 else 1024}")
    a(adv)
    for r in range(256): a(f"v_accvgpr_write_b32 a{r}, 0")
    if tl: a("s_waitcnt vmcnt(0)"); tl(5)
    a(f"s_cmp_eq_u32 s{G_MAT}, 1\ns_cbranch_scc1 L{tag}_v")
    def stage(st, swap, load):
        a("s_waitcnt vmcnt(0)\ns_barrier")
        a.lq = []
        for x in read_items(0, 0): a.ds(x, "f0")
        dm = dma_items(st ^ 1) if load else []
        for kk in range(4):
            a.wl(f"f{kk & 1}")
            kstep(kk & 1, swap, read_items(kk + 1, (kk + 1) & 1) if kk < 3 else None, dm)
        if load:
            a(adv)
            for r in XRk + WRb: a(f"v_xor_b32 v{r}, {STG}, v{r}")
    for swap in (0, 1):
        t2 = f"{tag}{'v' if swap else 'k'}"
        if swap: a.label(f"L{tag}_v")
        a(f"s_mov_b32 s{G_IT}, 0")
        a.label(f"L{t2}_loop")
        stage(0, swap, True); stage(1, swap, True)
        a(f"s_add_u32 s{G_IT}, s{G_IT}, 1\ns_cmp_lt_u32 s{G_IT}, 4\ns_cbranch_scc1 L{t2}_loop")
        stage(0, swap, False)
        if pre_epi: pre_epi(t2)
        if tl: tl(6)
        T = 10
        a(f"v_lshrrev_b32 v{T}, 4, v{L16}\nv_lshrrev_b32 v{T+1}, 5, v{T}\nv_lshlrev_b32 v{T+1}, 8, v{T+1}")
        if swap:
            a(f"v_bfe_u32 v{T+2}, v{T}, 4, 1\nv_lshl_or_b32 v{T+1}, v{T+2}, 10, v{T+1}\nv_and_b32 v{T+2}, 0xf0, v{L16}\nv_or_b32 v{OA}, v{T+1}, v{T+2}")
        else:
            a(f"""
            v_bfe_u32 v{T+2}, v{T}, 3, 1
            v_lshl_or_b32 v{T+1}, v{T+2}, 10, v{T+1}
            v_bfe_u32 v{T+2}, v{T}, 4, 1
            v_lshl_or_b32 v{T+1}, v{T+2}, 7, v{T+1}
            v_and_b32 v{T+2}, 0x70, v{L16}
            v_or_b32 v{OA}, v{T+1}, v{T+2}
            """)
        cb = fbits((128 ** -0.5) * math.log2(math.e))
        a(f"""
        s_lshl_b32 s{G_T0}, s{G_RB}, 3
        s_lshr_b32 s{G_T1}, s{S_W}, 1
        s_lshl_b32 s{G_T1}, s{G_T1}, 2
        s_add_u32 s{G_T0}, s{G_T0}, s{G_T1}
        s_lshl_b32 s{G_OUT}, s{G_T0}, 18
        s_lshl_b32 s{G_T0}, s{G_CB}, 1
        s_and_b32 s{G_T1}, s{S_W}, 1
        s_add_u32 s{G_T0}, s{G_T0}, s{G_T1}
        s_lshl_b32 s{G_T0}, s{G_T0}, 13
        s_add_u32 s{G_OUT}, s{G_OUT}, s{G_T0}
        s_lshl_b32 s{G_T0}, s{G_MAT}, 24
        s_add_u32 s{G_OUT}, s{G_OUT}, s{G_T0}
        s_cmp_eq_u32 s{G_MAT}, 2
        s_cselect_b32 s{G_C}, {cb}, 1.0
        s_mov_b32 s{G_C+1}, s{G_C}
        s_nop 7
        s_nop 7
        """)
        n = 0
        for j in range(4):
            for i in range(4):
                a(f"s_add_u32 s{G_T0}, s{G_OUT}, {j*262144 + i*2048}")
                for jj in range(2):
                    r0 = 16 + 12 * (n % 4); n += 1
                    for e in range(8): a(f"v_accvgpr_read_b32 v{r0+e}, a{(i*4+j)*16 + 8*jj + e}")
                    if not swap:
                        for e in range(0, 8, 2): a(f"v_pk_mul_f32 {v(r0+e,2)}, {v(r0+e,2)}, s[{G_C}:{G_C+1}]")
                    for e in range(4): a(f"v_cvt_pk_bf16_f32 v{r0+8+e}, v{r0+2*e}, v{r0+2*e+1}")
                    a(f"buffer_store_dwordx4 {v(r0+8,4)}, v{OA}, s[8:11], s{G_T0} offen offset:{jj*512} sc1")
        if not swap: a(f"s_branch L{tag}_end")
    a.label(f"L{tag}_end")
    a("s_waitcnt vmcnt(0)\ns_barrier")
```

```python
from asmlib import *
from layout import *
import math, struct
def fbits(x): return struct.unpack("<I", struct.pack("<f", x))[0]

S_H, S_W = 20, 21
X_TEAM = 19
X_SEG = 22
X_T0, X_T1, X_T2 = 24, 25, 26
X_KV = 27
X_HI = 28
X_XP = 29
X_OUT = 30
X_SPIN = 31
X_GEN = 32
X_FL = 33
X_MSK = 36
X_ONE = 52
X_OSRD = 56
S_DBG = 100
X_U2 = 62
L16, IDX, TSEL, BP, TMP = 0, 1, 2, 4, 5
RADR, OADR, SLO, SHI = 8, 9, 12, 16
WREG0 = 80
LMEM = 0
LKM = 9216
LVM = LKM + 4096
LO = LVM + 4096
LST = LO + 8192
LSTA = 147456
LSTG = 16384

def wreg(n): return (v(WREG0 + 8 * n, 8) if n < 22 else ag(8 * (n - 22), 8))
def wpair(n, jj):
    t = wreg(n); p = t[0]; b = int(t[2:t.index(":")]); return f"{p}[{b+2*jj}:{b+2*jj+1}]"
def KW(c, half): return 2 * c + half
def VW(c, half): return 18 + 2 * c + half
def OWq(T, ks):
    n = 36 + 2 * T + (ks >> 1); t = wreg(n); p = t[0]; b = int(t[2:t.index(":")]) + 4 * (ks & 1)
    return p, b
def cvt(a, d, x, y): a(f"v_cvt_pk_bf16_f32 v{d}, v{x}, v{y}")
def m32(a, d, A, B, C="0"): a(f"v_mfma_f32_16x16x32_bf16 {v(d,4)}, {A}, {B}, {C}")
def m16(a, d, A, B, C="0"): a(f"v_mfma_f32_16x16x16_bf16 {v(d,4)}, {A}, {B}, {C}")

def prologue(a, w):
    T = 20; LANE = 79
    DQ, DO, TQ, TV, TO = 78, 77, 76, 75, 74
    base = LSTG + w * 32768
    a(f"""
    v_lshrrev_b32 v{LANE}, 4, v{L16}
    v_lshrrev_b32 v{T}, 2, v{LANE}
    v_and_b32 v{T+1}, 3, v{LANE}
    v_lshlrev_b32 v{T+1}, 4, v{T+1}
    v_lshl_add_u32 v{DQ}, v{T}, 13, v{T+1}
    s_lshl_b32 s{X_T0}, s{S_H}, 8
    s_add_u32 s{X_T0}, s{X_T0}, {w*64}
    v_add_u32 v{DQ}, s{X_T0}, v{DQ}
    s_movk_i32 s{X_T1}, 1152
    s_mul_i32 s{X_T0}, s{S_H}, 147456
    v_lshrrev_b32 v{T}, 1, v{LANE}
    v_and_b32 v{T+1}, 1, v{LANE}
    v_lshlrev_b32 v{T+1}, 4, v{T+1}
    v_mad_u32_u24 v{DO}, v{T}, s{X_T1}, v{T+1}
    v_add_u32 v{DO}, s{X_T0}, v{DO}
    v_lshrrev_b32 v{T+2}, 4, v{LANE}
    v_bfe_u32 v{T+3}, v{LANE}, 2, 2
    v_and_b32 v{T+4}, 3, v{LANE}
    v_lshl_add_u32 v{T}, v{T+2}, 3, v{T+3}
    v_lshlrev_b32 v{T}, 6, v{T}
    v_add_u32 v{T}, {base}, v{T}
    v_lshl_add_u32 v{TV}, v{T+4}, 3, v{T}
    v_lshrrev_b32 v{T+1}, 1, v{T+4}
    v_lshl_add_u32 v{T}, v{T+1}, 5, v{T}
    v_and_b32 v{T+1}, 1, v{T+4}
    v_lshl_add_u32 v{TQ}, v{T+1}, 3, v{T}
    v_lshl_add_u32 v{T}, v{T+2}, 2, v{T+3}
    v_lshlrev_b32 v{T}, 5, v{T}
    v_lshl_add_u32 v{TO}, v{T+4}, 3, v{T}
    v_add_u32 v{TO}, {base}, v{TO}
    s_load_dwordx2 s[64:65], s[0:1], 64
    s_load_dwordx2 s[68:69], s[0:1], 72
    s_load_dwordx2 s[72:73], s[0:1], 80
    s_load_dwordx2 s[{X_OSRD}:{X_OSRD+1}], s[0:1], 96
    s_waitcnt lgkmcnt(0)
    s_mov_b32 s{X_OSRD+2}, 4718592
    s_mov_b32 s{X_OSRD+3}, 0x20000
    """)
    for r in (64, 68, 72): a(f"s_mov_b32 s{r+2}, 4718592\ns_mov_b32 s{r+3}, 0x20000")
    units = [("K", c) for c in range(9)] + [("V", c) for c in range(9)] + [("O", t) for t in range(9)]
    def issue(n):
        m, x = units[n]
        for i in range(4):
            if m == "O": so, vo, sr = (32 * i) * 1152 + (9 * w + x) * 32, DO, 72
            else: so, vo, sr = (64 * x + 16 * i) * 8192, DQ, (64 if m == "K" else 68)
            a(f"s_mov_b32 m0, {base + (n % 8) * 4096 + i * 1024}\ns_mov_b32 s{X_T0}, {so}")
            a.vm(f"buffer_load_dwordx4 v{vo}, s[{sr}:{sr+3}], s{X_T0} offen lds", f"u{n}")
    def consume(n):
        m, x = units[n]; sb = (n % 8) * 4096
        a.wv(f"u{n}")
        for half in range(2):
            for jj in range(4):
                if m == "K": ad, off, op = TQ, sb + (32 * (jj >> 1) + 4 * (jj & 1)) * 64 + 16 * half, KW(x, half)
                elif m == "V": ad, off, op = TV, sb + (32 * (jj >> 1) + 4 * (jj & 1)) * 64 + 32 * half, VW(x, half)
                else: ad, off, op = TO, sb + (64 * half + 16 * jj) * 32, 36 + 2 * x + half
                a.ds(f"ds_read_b64_tr_b16 {wpair(op, jj)}, v{ad} offset:{off}", "tr")
        a.wl0()
    for n in range(7): issue(n)
    for n in range(27):
        if n + 7 < 27: issue(n + 7)
        consume(n)
    qt = w & 1
    a(f"""
    v_bfe_u32 v{T+1}, v{LANE}, 3, 1
    v_cmp_eq_u32 vcc, 1, v{T+1}
    v_mov_b32 v{IDX}, 0x8888
    v_mov_b32 v{T}, 0xdddd
    v_cndmask_b32 v{IDX}, v{IDX}, v{T}, vcc
    v_and_b32 v{T}, 7, v{LANE}
    v_bfe_u32 v{T+1}, v{LANE}, 4, 1
    v_lshlrev_b32 v{T+1}, 2, v{T+1}
    v_sub_u32 v{T}, v{T}, v{T+1}
    v_and_b32 v{T+1}, 1, v{T}
    v_lshlrev_b32 v{T+1}, 4, v{T+1}
    v_mov_b32 v{T+2}, 0x3f80
    v_lshlrev_b32 v{T+2}, v{T+1}, v{T+2}
    v_ashrrev_i32 v{T}, 1, v{T}
    v_cmp_eq_u32 vcc, 0, v{T}
    v_cndmask_b32 v{TSEL}, 0, v{T+2}, vcc
    v_cmp_eq_u32 vcc, 1, v{T}
    v_cndmask_b32 v{TSEL+1}, 0, v{T+2}, vcc
    v_and_b32 v{BP}, 0x33f, v{L16}
    v_bfe_u32 v{T}, v{L16}, 7, 1
    v_lshl_or_b32 v{BP}, v{T}, 6, v{BP}
    v_bfe_u32 v{T}, v{L16}, 6, 1
    v_lshl_or_b32 v{BP}, v{T}, 7, v{BP}
    v_and_b32 v{T}, 16, v{L16}
    v_mov_b32 v{T+2}, 0x3f80
    v_lshlrev_b32 v{T+2}, v{T}, v{T+2}
    v_bfe_u32 v{T}, v{L16}, 5, 3
    """)
    for j in range(4): a(f"v_cmp_eq_u32 vcc, {j}, v{T}\nv_cndmask_b32 v{SLO+j}, 0, v{T+2}, vcc")
    for j in range(4): a(f"v_cmp_eq_u32 vcc, {j+4}, v{T}\nv_cndmask_b32 v{SHI+j}, 0, v{T+2}, vcc")
    a(f"""
    v_bfe_u32 v{T}, v{LANE}, 3, 1
    v_and_b32 v{T+1}, 7, v{LANE}
    v_lshl_add_u32 v{T}, v{T}, 4, v{T+1}
    v_lshrrev_b32 v{T+1}, 5, v{LANE}
    v_bfe_u32 v{T+2}, v{LANE}, 4, 1
    v_lshlrev_b32 v{T+2}, 2, v{T+2}
    v_lshl_add_u32 v{T+1}, v{T+1}, 4, v{T+2}
    v_sub_u32 v{T+1}, v{T}, v{T+1}
    v_add_u32 v{T+1}, {8*qt}, v{T+1}
    """)
    for tt in range(2):
        for r in range(4):
            a(f"v_cmp_le_i32 s[{X_MSK+8*tt+2*r}:{X_MSK+8*tt+2*r+1}], {8*tt+r}, v{T+1}")
    a(f"""
    v_lshrrev_b32 v{T+1}, 4, v{LANE}
    s_mov_b32 s{X_T1}, 36864
    v_and_b32 v{T+2}, 0xf0, v{L16}
    v_mad_u32_u24 v{RADR}, v{T+1}, s{X_T1}, v{T+2}
    v_bfe_u32 v{T+2}, v{LANE}, 4, 1
    v_lshl_add_u32 v{T}, v{T+2}, 3, v{T}
    s_movk_i32 s{X_T1}, 2304
    v_mul_u32_u24 v{OADR}, s{X_T1}, v{T}
    s_lshl_b32 s{X_T0}, s{S_H}, 2
    s_add_u32 s{X_T0}, s{X_T0}, {w}
    s_lshl_b32 s{X_T0}, s{X_T0}, 3
    s_add_u32 s{X_T0}, s{X_T0}, 1152
    s_lshl_b32 s{X_T1}, s{S_H}, 3
    s_add_u32 s{X_T1}, s{X_T1}, {1152 + 128*8}
    s_cmp_lt_u32 s{S_H}, 16
    s_cselect_b32 s{X_U2}, {1 if w == 0 else 0}, 0
    s_cmp_eq_u32 s{X_U2}, 1
    s_cselect_b32 s{X_T1}, s{X_T1}, 0x80000000
    v_mov_b32 v{T+1}, s{X_T0}
    v_mov_b32 v{T+2}, s{X_T1}
    v_cmp_lt_u32 vcc, 31, v{LANE}
    v_cndmask_b32 v{T+1}, v{T+1}, v{T+2}, vcc
    v_add_u32 v{OADR}, v{OADR}, v{T+1}
    s_mov_b32 s{X_ONE}, 0x3f803f80
    s_mov_b32 s{X_ONE+1}, 0x3f803f80
    s_mov_b32 s{X_ONE+2}, 0x3f003f00
    s_mov_b32 s{X_ONE+3}, 0x3f003f00
    s_mov_b32 s{X_SPIN}, 0
    s_mov_b32 s{X_SEG}, s{X_TEAM}
    s_mov_b32 s{X_GEN}, 1
    s_lshl_b32 s{X_FL}, s{X_TEAM}, 7
    s_add_u32 s{X_FL}, s{X_FL}, {XFLAG}
    s_mul_i32 s{X_XP}, s{X_TEAM}, {XP_TEAM}
    s_add_u32 s{X_XP}, s{X_XP}, {XP}
    v_add_u32 v{T}, {LSTA + w*4096}, v{L16}
    ds_write_b128 v{T}, v[2:5]
    ds_write_b128 v{T}, v[8:11] offset:1024
    ds_write_b128 v{T}, v[12:15] offset:2048
    ds_write_b128 v{T}, v[16:19] offset:3072
    s_waitcnt lgkmcnt(0)
    s_barrier
    """)

def loop(a, w, sc, Lend, nteams=2, wait_ready=True, st=False):
    tag = f"x{w}{'s' if sc else 'f'}"
    qt, fh = w & 1, w >> 1
    def spin(): a(f"s_add_u32 s{X_SPIN}, s{X_SPIN}, 1\ns_cmp_gt_u32 s{X_SPIN}, 2000000\ns_cbranch_scc1 {Lend}")
    QF, VF, T0, T1, KA, KB, VA, VB, SP = 8, 24, 40, 44, 48, 52, 56, 60, 76
    RING = [64, 68, 72]; KF = KA
    def stamp(i):
        if st: a(f"s_memtime s[76:77]\ns_waitcnt lgkmcnt(0)\ns_sub_u32 s79, s76, s78\ns_mov_b32 s78, s76\ns_add_u32 s{80+i}, s{80+i}, s79"); a.lq = []
    a.label(f"L{tag}_top")
    stamp(0)
    a(f"""
    s_lshl_b32 s{X_KV}, s{X_SEG}, 18
    s_lshl_b32 s{X_T0}, s{S_H}, 13
    s_add_u32 s{X_KV}, s{X_KV}, s{X_T0}
    s_lshl_b32 s{X_HI}, s{X_SEG}, 14
    s_add_u32 s{X_HI}, s{X_HI}, {HIST}
    s_mul_i32 s{X_OUT}, s{X_SEG}, {32*2304}
    """)
    if wait_ready:
        Lw = f"L{tag}_rdy"
        a(f"s_and_b32 s{X_T0}, s{X_SEG}, 7\ns_cmp_ge_u32 s{X_T0}, {nteams}\ns_cbranch_scc1 {Lw}k")
        if w == 0:
            a(f"s_lshr_b32 s{X_T0}, s{X_SEG}, 3\ns_lshl_b32 s{X_T0}, s{X_T0}, 2\nv_mov_b32 v{TMP}, s{X_T0}\ns_mov_b64 exec, 1")
            a.label(Lw)
            a(f"global_load_dword v{TMP+1}, v{TMP}, s[{S_DBG}:{S_DBG+1}] offset:{D_KV*4} sc1")
            a(f"global_load_dword v{TMP+2}, v{TMP}, s[{S_DBG}:{S_DBG+1}] offset:{D_Q*4} sc1")
            spin()
            a(f"""
            s_waitcnt vmcnt(0)
            v_lshl_add_u32 v{TMP+1}, v{TMP+2}, 1, v{TMP+1}
            v_cmp_ne_u32 vcc, 64, v{TMP+1}
            s_cbranch_vccz {Lw}j
            s_sleep 16
            s_branch {Lw}
            {Lw}j:
            s_mov_b64 exec, -1
            """)
        a(f"s_barrier\n{Lw}k:")
    a(f"s_add_u32 s{X_T0}, s{X_KV}, {QX + qt*1024}")
    a(f"s_add_u32 s{X_T1}, s{X_T0}, 4096")
    for ks in range(4):
        a.vm(f"buffer_load_dwordx4 {v(QF+4*ks,4)}, v{L16}, s[8:11], s{X_T0 + (ks >> 1)} offen offset:{(ks&1)*2048} sc1", f"q{ks}")
    a(f"s_add_u32 s{X_T2}, s{X_KV}, 4096")
    for tt in range(2):
        buf = KF if tt == 0 else VF
        for ks in range(4):
            a.vm(f"buffer_load_dwordx4 {v(buf+4*ks,4)}, v{L16}, s[8:11], s{X_KV if ks < 2 else X_T2} offen offset:{(ks&1)*2048 + tt*1024} sc1", f"k{tt}{ks}")
    for tt in range(2):
        buf = KF if tt == 0 else VF
        for ks in range(4):
            a.wv(f"q{ks}", f"k{tt}{ks}")
            m32(a, (T0, T1)[tt], v(buf + 4 * ks, 4), v(QF + 4 * ks, 4), "0" if ks == 0 else v((T0, T1)[tt], 4))
    a(f"s_add_u32 s{X_T0}, s{X_KV}, {VX + fh*4096}")
    for i in range(4):
        a.vm(f"buffer_load_dwordx4 {v(VF+4*i,4)}, v{L16}, s[8:11], s{X_T0} offen offset:{i*1024} sc1", "vx")
    a(f"v_mov_b32 v{TMP}, 0xff800000")
    for tt in range(2):
        for r in range(4):
            a(f"v_cndmask_b32 v{(T0,T1)[tt]+r}, v{TMP}, v{(T0,T1)[tt]+r}, s[{X_MSK+8*tt+2*r}:{X_MSK+8*tt+2*r+1}]")
    stamp(1)
    own = [w, w + 4] + ([8] if w == 3 else [])
    PB = RING[0]
    Lh = f"L{tag}_h"
    a(f"s_cmp_ge_u32 s{X_SEG}, 61\ns_cbranch_scc1 {Lh}")
    if w == 0:
        a(f"v_mov_b32 v{TMP+1}, 8192\ns_mov_b64 exec, 1")
        a.label(Lh + "l")
        a(f"buffer_load_dword v{TMP}, v{TMP+1}, s[8:11], s{X_HI} offen sc1")
        a(f"s_add_u32 s{X_SPIN}, s{X_SPIN}, 1\ns_cmp_gt_u32 s{X_SPIN}, 2000000\ns_cbranch_scc1 {Lh}m")
        a(f"s_waitcnt vmcnt(0)\nv_cmp_eq_u32 vcc, -1, v{TMP}\ns_cbranch_vccz {Lh}m\ns_sleep 10\ns_branch {Lh}l")
        a.label(Lh + "m")
        a("s_mov_b64 exec, -1")
    a("s_barrier")
    a.label(Lh)
    for i, c in enumerate(own):
        a(f"s_add_u32 s{X_T0}, s{X_HI}, {c*1024}")
        a(f"buffer_load_dwordx4 {v(PB+4*i,4)}, v{L16}, s[8:11], s{X_T0} offen sc1")
    spin()
    a("s_waitcnt vmcnt(0)")
    regs = [PB + i for i in range(4 * len(own))]
    a(f"v_max3_u32 v{TMP}, v{regs[0]}, v{regs[1]}, v{regs[2]}")
    rest = regs[3:]
    while len(rest) >= 2:
        a(f"v_max3_u32 v{TMP}, v{TMP}, v{rest[0]}, v{rest[1]}"); rest = rest[2:]
    a(f"v_max_u32 v{TMP}, v{TMP}, v{rest[0]}")
    a(f"v_cmp_eq_u32 vcc, -1, v{TMP}\ns_cbranch_vccz {Lh}k\ns_sleep 2\ns_branch {Lh}")
    a.label(Lh + "k")
    stamp(2)
    a.vq = []
    for i, c in enumerate(own): a.ds(f"ds_write_b128 v{L16}, {v(PB+4*i,4)} offset:{LMEM + c*1024}", "mw")
    a(f"""
    s_add_u32 s{X_T0}, s{X_SEG}, {nteams}
    s_xor_b32 s{X_T0}, s{X_T0}, s{X_SEG}
    s_cmp_ge_u32 s{X_T0}, 8
    s_cselect_b32 s{X_T0}, 0x80000000, 0
    s_add_u32 s{X_T0}, s{X_T0}, {nteams*262144 + w*2048}
    s_add_u32 s{X_T0}, s{X_T0}, s{X_KV}
    v_and_b32 v{SP}, 0x1f0, v{L16}
    v_lshlrev_b32 v{SP}, 2, v{SP}
    v_lshrrev_b32 v{SP+1}, 9, v{L16}
    v_lshl_or_b32 v{SP+1}, v{SP+1}, 24, v{SP}
    v_add_u32 v{SP}, {QX}, v{SP}
    buffer_load_dword v7, v{SP+1}, s[8:11], s{X_T0} offen sc1
    buffer_load_dword v7, v{SP}, s[8:11], s{X_T0} offen sc1
    """)
    for q in (KA, KB, VA, VB): a(f"v_mov_b64 {v(q,2)}, 0\nv_mov_b64 {v(q+2,2)}, 0")
    a.wl0(); a("s_barrier")
    def rd(c): a.ds(f"ds_read_b128 {v(RING[c%3],4)}, v{L16} offset:{LMEM + c*1024}", f"A{c}")
    rd(0); rd(1); rd(2)
    for c in range(9):
        a.wl(f"A{c}")
        for d, op in ((KA, KW(c, 0)), (KB, KW(c, 1)), (VA, VW(c, 0)), (VB, VW(c, 1))):
            a(f"v_smfmac_f32_16x16x64_bf16 {v(d,4)}, {v(RING[c%3],4)}, {wreg(op)}, v{IDX}")
        if c + 3 < 9: rd(c + 3)
    cvt(a, KA, KA, KA + 1); cvt(a, KA + 1, KA + 2, KA + 3); cvt(a, KA + 2, KB, KB + 1); cvt(a, KA + 3, KB + 2, KB + 3)
    m16(a, KB, v(KA, 2), v(TSEL, 2)); m16(a, SP, v(KA + 2, 2), v(TSEL, 2))
    cvt(a, VA, VA, VA + 1); cvt(a, VA + 1, VA + 2, VA + 3); cvt(a, VA + 2, VB, VB + 1); cvt(a, VA + 3, VB + 2, VB + 3)
    a.ds(f"ds_write_b128 v{L16}, {v(VA,4)} offset:{LVM + w*1024}", "kw")
    cvt(a, KA, KB, KB + 1); cvt(a, KA + 1, KB + 2, KB + 3); cvt(a, KA + 2, SP, SP + 1); cvt(a, KA + 3, SP + 2, SP + 3)
    a.ds(f"ds_write_b128 v{L16}, {v(KA,4)} offset:{LKM + w*1024}", "kw")
    a.wl0(); a("s_barrier")
    stamp(3)
    KM = RING + [SP]; TM = VB
    for ks in range(4): a.ds(f"ds_read_b128 {v(KM[ks],4)}, v{L16} offset:{LKM + ks*1024}", f"km{ks}")
    for j in range(2): a.ds(f"ds_read_b128 {v((KA, KB)[j],4)}, v{L16} offset:{LVM + (2*fh+j)*1024}", "vm")
    a(f"v_max3_f32 v{TMP}, v{T0}, v{T0+1}, v{T0+2}\nv_max3_f32 v{TMP+1}, v{T0+3}, v{T1}, v{T1+1}\nv_max3_f32 v{TMP}, v{TMP}, v{T1+2}, v{T1+3}")
    for ks in range(4):
        a.wl(f"km{ks}")
        m32(a, TM, v(KM[ks], 4), v(QF + 4 * ks, 4), "0" if ks == 0 else v(TM, 4))
    ZD, ON, HF, PM, PX = QF, QF + 4, QF + 8, QF + 10, QF + 12
    a(f"""
    v_max3_f32 v{TMP}, v{TMP}, v{TMP+1}, v{TM}
    v_max3_f32 v{TMP}, v{TMP}, v{TM+1}, v{TM+2}
    v_max_f32 v{TMP}, v{TMP}, v{TM+3}
    v_mov_b32 v{TMP+1}, v{TMP}
    v_permlane16_swap_b32 v{TMP}, v{TMP+1}
    v_max_f32 v{TMP}, v{TMP}, v{TMP+1}
    v_mov_b32 v{TMP+1}, v{TMP}
    v_permlane32_swap_b32 v{TMP}, v{TMP+1}
    v_max_f32 v{TMP}, v{TMP}, v{TMP+1}
    """)
    for q in (T0, T1, TM):
        for r in range(4): a(f"v_sub_f32 v{q+r}, v{q+r}, v{TMP}")
    for q in (T0, T1, TM):
        for r in range(4): a(f"v_exp_f32 v{q+r}, v{q+r}")
    a(f"v_mov_b64 {v(ON,2)}, s[{X_ONE}:{X_ONE+1}]\nv_mov_b64 {v(ON+2,2)}, s[{X_ONE}:{X_ONE+1}]\nv_mov_b64 {v(HF,2)}, s[{X_ONE+2}:{X_ONE+3}]")
    cvt(a, PX, T0, T0 + 1); cvt(a, PX + 1, T0 + 2, T0 + 3); cvt(a, PX + 2, T1, T1 + 1); cvt(a, PX + 3, T1 + 2, T1 + 3)
    cvt(a, PM, TM, TM + 1); cvt(a, PM + 1, TM + 2, TM + 3)
    a.wl("vm")
    m32(a, ZD, v(ON, 4), v(PX, 4))
    for i in range(4): m32(a, KM[i], v(VF + 4 * i, 4), v(PX, 4))
    m16(a, ZD, v(HF, 2), v(PM, 2), v(ZD, 4))
    for i in range(4): m16(a, KM[i], v(KA + 2 * i, 2), v(PM, 2), v(KM[i], 4))
    a(f"v_rcp_f32 v{TMP+1}, v{ZD}")
    for i in range(4):
        for r in (0, 2): a(f"v_pk_mul_f32 {v(KM[i]+r,2)}, {v(KM[i]+r,2)}, {v(TMP+1,2)} op_sel_hi:[1,0]")
    for j in range(2):
        d0, d1 = KM[2 * j], KM[2 * j + 1]
        cvt(a, d0, d0, d0 + 1); cvt(a, d0 + 1, d0 + 2, d0 + 3); cvt(a, d0 + 2, d1, d1 + 1); cvt(a, d0 + 3, d1 + 2, d1 + 3)
        a.ds(f"ds_write_b128 v{L16}, {v(d0,4)} offset:{LO + (qt*4 + 2*fh + j)*1024}", "ow")
    a.wl0(); a("s_barrier")
    stamp(4)
    OB = 8
    for i in range(8): a.ds(f"ds_read_b128 {v(OB+4*i,4)}, v{L16} offset:{LO + i*1024}", f"o{i}")
    a(f"s_mul_i32 s{X_T0}, s{S_H}, 36864\ns_add_u32 s{X_T0}, s{X_T0}, s{X_XP}\ns_add_u32 s{X_T0}, s{X_T0}, {9*w*1024}")
    a(f"s_add_u32 s{X_T1}, s{X_T0}, 4096\ns_add_u32 s{X_T2}, s{X_T0}, 8192")
    def post(T):
        d = 40 + 8 * (T % 5)
        cvt(a, d, d, d + 1); cvt(a, d + 1, d + 2, d + 3); cvt(a, d + 2, d + 4, d + 5); cvt(a, d + 3, d + 6, d + 7)
        a(f"buffer_store_dwordx4 {v(d,4)}, v{L16}, s[8:11], s{X_T0 + (T >> 2)} offen offset:{(T&3)*1024} {sc}")
    for T in range(9):
        d = 40 + 8 * (T % 5)
        for q in range(2):
            for ks in range(4):
                if T == 0: a.wl(f"o{4*q+ks}")
                p, b = OWq(T, ks)
                m32(a, d + 4 * q, f"{p}[{b}:{b+3}]", v(OB + 16 * q + 4 * ks, 4), "0" if ks == 0 else v(d + 4 * q, 4))
            if q == 0 and T > 0: post(T - 1)
    post(8)
    stamp(5)
    STA = TMP
    a(f"v_add_u32 v{STA}, {LSTA + w*4096}, v{L16}")
    a.ds(f"ds_read_b64 v[2:3], v{STA} offset:1024", "st")
    a.ds(f"ds_read_b128 v[72:75], v{STA} offset:2048", "st")
    a.ds(f"ds_read_b128 v[76:79], v{STA} offset:3072", "st")
    a("s_waitcnt vmcnt(0) lgkmcnt(0)\ns_barrier"); a.lq = []
    if w == 0:
        a(f"""
        s_lshl_b32 s{X_T0}, s{S_H}, 2
        s_add_u32 s{X_T0}, s{X_T0}, s{X_FL}
        v_mov_b32 v6, s{X_GEN}
        v_mov_b32 v7, 0
        s_mov_b64 exec, 1
        buffer_store_dword v6, v7, s[8:11], s{X_T0} offen {sc}
        s_mov_b64 exec, -1
        """)
    Lf = f"L{tag}_fl"
    a(f"v_lshrrev_b32 v7, 2, v{L16}\nv_and_b32 v7, 0x7c, v7")
    a.label(Lf)
    a(f"buffer_load_dword v6, v7, s[8:11], s{X_FL} offen sc1")
    spin()
    a(f"s_waitcnt vmcnt(0)\nv_cmp_gt_u32 vcc, s{X_GEN}, v6\ns_cbranch_vccnz {Lf}")
    stamp(6)
    a(f"s_lshl_b32 s{X_T0}, s{S_H}, 10\ns_add_u32 s{X_T0}, s{X_T0}, {w*256}\ns_add_u32 s{X_T0}, s{X_T0}, s{X_XP}")
    for i in range(8):
        a(f"buffer_load_dwordx4 {v(8+4*i,4)}, v2, s[8:11], s{X_T0} offen sc1")
        if i < 7: a(f"s_add_u32 s{X_T0}, s{X_T0}, {4*36864}")
    if w == 0:
        a(f"s_cmp_eq_u32 s{X_U2}, 0\ns_cbranch_scc1 L{tag}_one")
        a(f"s_lshl_b32 s{X_T0}, s{S_H}, 8\ns_add_u32 s{X_T0}, s{X_T0}, {128*256}\ns_add_u32 s{X_T0}, s{X_T0}, s{X_XP}")
        for i in range(8):
            a(f"buffer_load_dwordx4 {v(40+4*i,4)}, v2, s[8:11], s{X_T0} offen sc1")
            if i < 7: a(f"s_add_u32 s{X_T0}, s{X_T0}, {4*36864}")
        for i in range(16):
            a(f"s_waitcnt vmcnt({15-i})")
            m32(a, 4, "v[72:75]" if i < 8 else "v[76:79]", v(8 + 4 * i, 4), "0" if i == 0 else "v[4:7]")
        a(f"s_branch L{tag}_two")
        a.label(f"L{tag}_one")
    for i in range(8):
        a(f"s_waitcnt vmcnt({7-i})")
        m32(a, 4, "v[72:75]", v(8 + 4 * i, 4), "0" if i == 0 else "v[4:7]")
    if w == 0: a.label(f"L{tag}_two")
    cvt(a, 8, 4, 5); cvt(a, 9, 6, 7)
    a(f"buffer_store_dwordx2 v[8:9], v3, s[{X_OSRD}:{X_OSRD+3}], s{X_OUT} offen")
    a(f"v_add_u32 v10, {LSTA + w*4096}, v{L16}")
    a(f"ds_read_b128 v[2:5], v10")
    a(f"""
    s_xor_b32 s{X_XP}, s{X_XP}, {2*MB}
    s_add_u32 s{X_GEN}, s{X_GEN}, 1
    s_add_u32 s{X_SEG}, s{X_SEG}, {nteams}
    s_cmp_lt_u32 s{X_SEG}, 64
    s_waitcnt lgkmcnt(0)
    s_cbranch_scc1 L{tag}_top
    s_waitcnt vmcnt(0)
    """)
```

```python
import sys, re
from asmlib import *
from layout import *
import chain, xteam, g1, bra
NAME = "concat_heads__grouped_kv_mqa__memory_aug_recurrent_mem_tr__prompt_kernel"
G_RND, G_X, G_TK, G_VX, G_MODE, DBG = 95, 96, 97, 98, 99, 100
S_H, S_W = 20, 21
CHAIN_P = dict(full=1, d1=22, d1e=14, d3=56, d2e=16, d2=6, wa1=4, midu=2)

def wait_ge(a, lab, idx_val, Lend, sleep=4):
    a(f"v_mov_b32 v40, 0\ns_mov_b32 s94, 0\ns_cmp_lg_u32 s{S_W}, 0\ns_cbranch_scc1 {lab}b\ns_mov_b64 exec, 1")
    a.label(lab)
    for i, (idx, val) in enumerate(idx_val): a(f"global_load_dword v{41+i}, v40, s[{DBG}:{DBG+1}] offset:{idx*4} sc1")
    a(f"s_add_u32 s94, s94, 1\ns_cmp_gt_u32 s94, 2000000\ns_cbranch_scc1 {Lend}\ns_waitcnt vmcnt(0)")
    for i, (idx, val) in enumerate(idx_val):
        a(f"v_cmp_gt_u32 vcc, {val}, v{41+i}" if val <= 64 else f"v_cmp_gt_u32 vcc, {hex(val)}, v{41+i}")
        a(f"s_cbranch_vccnz {lab}z")
    a(f"s_branch {lab}k\n{lab}z:\ns_sleep {sleep}\ns_branch {lab}\n{lab}k:\ns_mov_b64 exec, -1\n{lab}b:\ns_barrier\n{lab}e:")

def signal(a, lab, off_expr):
    a(f"s_cmp_lg_u32 s{S_W}, 0\ns_cbranch_scc1 {lab}")
    a(f"v_mov_b32 v40, {off_expr}\nv_mov_b32 v41, 1\ns_mov_b64 exec, 1\nglobal_atomic_add v40, v41, s[{DBG}:{DBG+1}]\ns_mov_b64 exec, -1")
    a.label(lab)

def verify(a, lab, Lend, role='L_role'):
    a(f"s_cmp_lg_u32 s{G_MODE}, 0\ns_cbranch_scc1 {lab}k")
    wait_ge(a, lab + "a", [(D_ARR, 256)], Lend, 2)
    a(f"global_load_dwordx4 v[44:47], v40, s[{DBG}:{DBG+1}] offset:{D_XCD*4} sc1")
    a(f"global_load_dwordx4 v[48:51], v40, s[{DBG}:{DBG+1}] offset:{D_XCD*4+16} sc1")
    a(f"s_waitcnt vmcnt(0)\ns_mov_b32 s93, 0\ns_mov_b32 s94, s{G_TK}")
    for y in range(8):
        a(f"""
        v_readfirstlane_b32 s92, v{44+y}
        s_cmp_lg_u32 s92, 32
        s_cselect_b32 s93, 1, s93
        s_cmp_gt_u32 s{G_X}, {y}
        s_cselect_b32 s92, s92, 0
        s_add_u32 s94, s94, s92
        """)
    a(f"""
    s_mov_b32 s{G_MODE}, 1
    s_cmp_eq_u32 s93, 0
    s_cbranch_scc1 {lab}k
    s_mov_b32 s{G_MODE}, 2
    s_lshr_b32 s{G_VX}, s94, 5
    s_and_b32 s{S_H}, s94, 31
    s_waitcnt vmcnt(0) lgkmcnt(0)
    s_barrier
    s_branch {role}
    {lab}k:
    """)

def gen(P=None, fake=0):
    P = dict(CHAIN_P, **(P or {}))
    a = Asm(); E = "L_end"
    def tl(i):
        if not P.get("tl"): return
        a(f"""
        s_memrealtime s[90:91]
        s_lshl_b32 s92, s{G_VX}, 5
        s_add_u32 s92, s92, s{S_H}
        s_lshl_b32 s92, s92, 6
        s_add_u32 s92, s92, {100*MB + 4*i}
        s_waitcnt lgkmcnt(0)
        v_mov_b32 v44, s90
        v_mov_b32 v45, 0
        s_mov_b64 exec, 1
        buffer_store_dword v44, v45, s[8:11], s92 offen
        s_mov_b64 exec, -1
        s_waitcnt vmcnt(0)
        """)
    a(f"""
    s_cmp_ge_u32 s2, 256
    s_cbranch_scc1 {E}
    s_load_dwordx2 s[8:9], s[0:1], 112
    s_load_dwordx2 s[{DBG}:{DBG+1}], s[0:1], 104
    s_getreg_b32 s{G_X}, hwreg(HW_REG_XCC_ID, 0, 3)
    v_lshrrev_b32 v1, 6, v0
    v_readfirstlane_b32 s{S_W}, v1
    v_and_b32 v0, 63, v0
    v_lshlrev_b32 v0, 4, v0
    s_mov_b32 s{G_MODE}, 0
    """)
    if fake == 1: a(f"s_lshr_b32 s{G_X}, s2, 5")
    if fake == 2: a(f"s_lshr_b32 s{G_X}, s2, 6\ns_min_u32 s{G_X}, s{G_X}, 2")
    a(f"""
    s_waitcnt lgkmcnt(0)
    s_mov_b32 s10, 0x10000000
    s_mov_b32 s11, 0x20000
    s_cmp_lg_u32 s{S_W}, 0
    s_cbranch_scc1 L_tk
    s_lshl_b32 s3, s{G_X}, 2
    v_mov_b32 v40, s3
    v_mov_b32 v41, 1
    v_mov_b32 v43, 0
    s_mov_b64 exec, 1
    global_atomic_add v42, v40, v41, s[{DBG}:{DBG+1}] offset:{D_XCD*4} sc0
    s_waitcnt vmcnt(0)
    global_atomic_add v43, v41, s[{DBG}:{DBG+1}] offset:{D_ARR*4}
    ds_write_b32 v43, v42
    s_mov_b64 exec, -1
    s_waitcnt lgkmcnt(0)
    L_tk:
    s_barrier
    v_mov_b32 v43, 0
    ds_read_b32 v42, v43
    s_waitcnt lgkmcnt(0)
    v_readfirstlane_b32 s{G_TK}, v42
    s_barrier
    s_mov_b32 s{G_VX}, s{G_X}
    s_mov_b32 s{S_H}, s{G_TK}
    s_cmp_lt_u32 s{G_TK}, 32
    s_cbranch_scc1 L_role
    """)
    verify(a, "L_v0", E)
    a(f"""
    L_role:
    """)
    tl(0)
    a(f"""
    s_mov_b32 s{G_RND}, 0
    s_cmp_eq_u32 s{G_VX}, 0
    s_cbranch_scc1 L_chain
    s_cmp_ge_u32 s{G_VX}, 4
    s_cbranch_scc1 L_g1
    """)
    verify(a, "L_v3", E)
    a(f"""
    s_sub_u32 s{xteam.X_TEAM}, s{G_VX}, 1
    s_lshl_b32 s3, s{xteam.X_TEAM}, 5
    s_add_u32 s3, s3, s{S_H}
    s_cmp_ge_u32 s3, 64
    s_cselect_b32 s4, 0x80000000, 0
    s_lshl_b32 s3, s3, 14
    s_add_u32 s3, s3, s4
    s_lshl_b32 s4, s{S_W}, 12
    s_add_u32 s3, s3, s4
    s_add_u32 s3, s3, {HIST}
    v_mov_b64 v[40:41], -1
    v_mov_b64 v[42:43], -1
    """)
    for i in range(4): a(f"buffer_store_dwordx4 v[40:43], v0, s[8:11], s3 offen offset:{i*1024} sc1")
    a(f"""
    s_lshl_b32 s3, s{xteam.X_TEAM}, 7
    s_lshl_b32 s4, s{S_H}, 2
    s_add_u32 s3, s3, s4
    s_add_u32 s3, s3, {XFLAG}
    v_mov_b32 v44, 0
    s_mov_b64 exec, 1
    buffer_store_dword v44, v44, s[8:11], s3 offen sc1
    s_mov_b64 exec, -1
    s_waitcnt vmcnt(0)
    s_barrier
    """)
    signal(a, "L_s2", D_HIST * 4)
    a(f"""
    L_g1:
    s_add_u32 s3, s{G_VX}, 3
    s_cmp_ge_u32 s3, 7
    s_cselect_b32 s4, 7, 0
    s_sub_u32 s3, s3, s4
    s_lshl_b32 s3, s3, 1
    s_cmp_eq_u32 s{G_VX}, 3
    s_cselect_b32 s3, 1, s3
    s_lshl_b32 s4, s{G_VX}, 1
    s_sub_u32 s4, s4, 5
    s_cmp_eq_u32 s{G_RND}, 1
    s_cselect_b32 s3, s4, s3
    s_cmp_eq_u32 s{G_RND}, 2
    s_cselect_b32 s3, 11, s3
    s_and_b32 s4, s3, 1
    s_lshl_b32 s4, s4, 2
    s_and_b32 s5, s{S_H}, 3
    s_add_u32 s{g1.G_RB}, s4, s5
    s_lshr_b32 s4, s3, 1
    s_lshl_b32 s4, s4, 3
    s_lshr_b32 s5, s{S_H}, 2
    s_add_u32 s4, s4, s5
    s_and_b32 s{g1.G_CB}, s4, 15
    s_lshr_b32 s{g1.G_MAT}, s4, 4
    """)
    def tl1(i):
        lab = a.newlabel("L_tl")
        a(f"s_cmp_eq_u32 s{G_RND}, {P.get('tlr', 0)}\ns_cbranch_scc0 {lab}"); tl(i); a(f"s_memtime s[{70+2*(i-5)}:{71+2*(i-5)}]\ns_waitcnt lgkmcnt(0)")
        if i == 6: a(f"s_sub_u32 s72, s72, s70\nv_mov_b32 v44, s72\ns_mov_b64 exec, 1\nbuffer_store_dword v44, v45, s[8:11], s92 offen offset:4\ns_mov_b64 exec, -1")
        a.label(lab)
    if P.get("tl") == 2: tl1(4)
    def pre_epi(t2):
        verify(a, f"L_v1{t2}", E)
        a(f"s_lshr_b32 s3, s{g1.G_MAT}, 1\ns_add_u32 s3, s3, s{g1.G_RB}\ns_cmp_eq_u32 s3, 0\ns_cbranch_scc1 L_h{t2}e")
        wait_ge(a, f"L_h{t2}", [(D_KV, 32)], E, 12)
    g1.tile(a, "g", tl1 if P.get("tl") == 2 else None, pre_epi)
    a(f"""
    s_cmp_eq_u32 s{g1.G_MAT}, 2
    s_cselect_b32 s3, {D_Q*4}, {D_KV*4}
    s_lshl_b32 s4, s{g1.G_RB}, 2
    s_add_u32 s3, s3, s4
    """)
    signal(a, "L_s1", "s3")
    if P.get("tl"):
        a(f"s_cmp_eq_u32 s{G_RND}, 0\ns_cbranch_scc0 L_t1"); tl(1); a("L_t1:"); tl(2)
    a(f"""
    s_add_u32 s{G_RND}, s{G_RND}, 1
    s_cmp_lt_u32 s{G_VX}, 4
    s_cbranch_scc1 L_x
    s_cmp_eq_u32 s{G_RND}, 1
    s_cbranch_scc1 L_g1
    s_add_u32 s3, s{G_RND}, s{G_VX}
    s_cmp_eq_u32 s3, 6
    s_cbranch_scc1 L_g1
    s_sub_u32 s3, s{G_VX}, 4
    s_lshl_b32 s3, s3, 5
    s_add_u32 s{bra.A_TASK}, s3, s{S_H}
    """)
    bra.task(a, E)
    tl(3)
    a(f"{E}:\ns_endpgm")
    E = "L_endx"
    a.label("L_x")
    for w in range(3): a(f"s_cmp_eq_u32 s{S_W}, {w}\ns_cbranch_scc1 L_xw{w}")
    for w in (3, 0, 1, 2):
        a.label(f"L_xw{w}")
        xteam.prologue(a, w)
        wait_ge(a, f"L_xb{w}", [(D_HIST, 96)], E)
        tl(2)
        a(f"s_cmp_eq_u32 s{G_MODE}, 2\ns_cbranch_scc1 L_xs{w}")
        xteam.loop(a, w, "", E, nteams=3)
        tl(3)
        a(f"s_branch {E}")
        a.label(f"L_xs{w}")
        xteam.loop(a, w, "sc1", E, nteams=3)
        a(f"s_branch {E}")
    a(f"{E}:\ns_endpgm\nL_role2:\ns_branch L_role")
    E = "L_endc"
    a.label("L_chain")
    for w in range(3): a(f"s_cmp_eq_u32 s{S_W}, {w}\ns_cbranch_scc1 L_cw{w}")
    for w in (3, 0, 1, 2):
        a.label(f"L_cw{w}")
        def mid():
            verify(a, f"L_v2{w}", E, "L_role2")
            a(f"""
            s_mul_i32 s3, s{S_H}, 9216
            s_add_u32 s3, s3, {MBA + w*2048}
            s_add_u32 s92, s3, {MBA_SLOT}
            s_lshl_b32 s93, s{S_H}, 11
            s_add_u32 s93, s93, {MBB}
            v_mov_b64 v[40:41], -1
            v_mov_b64 v[42:43], -1
            """)
            for r in (3, 92):
                for i in range(3 if w == 3 else 2): a(f"buffer_store_dwordx4 v[40:43], v0, s[8:11], s{r} offen offset:{i*1024} sc1")
            if w < 2: a(f"buffer_store_dwordx4 v[40:43], v0, s[8:11], s93 offen offset:{w*1024} sc1")
            a("s_waitcnt vmcnt(0)\ns_barrier")
            signal(a, f"L_s3{w}", D_CBAR * 4)
        chain.prologue(a, w, P, mid)
        tl(1)
        wait_ge(a, f"L_cb{w}", [(D_CBAR, 32), (D_HIST, 96), (D_KV, 32)], E, 1)
        tl(2)
        if P.get("tl"): a("s_memtime s[88:89]\ns_mov_b32 s80, 0\ns_mov_b32 s83, 0\ns_mov_b32 s84, 0\ns_mov_b32 s85, 0")
        a(f"s_cmp_eq_u32 s{G_MODE}, 2\ns_cbranch_scc1 L_cs{w}")
        chain.loop(a, w, P, "", E)
        tl(3)
        if P.get("tl"):
            a(f"s_memtime s[86:87]\ns_waitcnt lgkmcnt(0)\ns_sub_u32 s86, s86, s88\nv_mov_b32 v44, s86\ns_mov_b64 exec, 1\nbuffer_store_dword v44, v45, s[8:11], s92 offen offset:4\ns_waitcnt vmcnt(0)")
            a(f"s_lshl_b32 s92, s{S_H}, 6\ns_add_u32 s92, s92, {101*MB + w*16}\nv_mov_b32 v40, s80\nv_mov_b32 v41, s83\nv_mov_b32 v42, s84\nv_mov_b32 v43, s85\nbuffer_store_dwordx4 v[40:43], v45, s[8:11], s92 offen\ns_waitcnt vmcnt(0)")
        a(f"s_branch {E}")
        a.label(f"L_cs{w}")
        chain.loop(a, w, P, "sc1", E)
        a(f"s_branch {E}")
    a(f"{E}:\ns_endpgm")
    fixed, nhz = fix_hazards(a.lines)
    cnt = {}
    for l in fixed:
        op = l.split(None, 1)[0]
        if not l.endswith(":") and " " in l: cnt[op] = cnt.get(op, 0) + 1
    al = {}
    for op, n in sorted(cnt.items(), key=lambda t: -t[1] * len(t[0])):
        if n * (len(op) - 3) > 400: al[op] = f"i{len(al)}"
    body = []
    for l in fixed:
        l = l.split(";")[0].rstrip()
        if not l: continue
        p = l.split(None, 1)
        if p[0] in al and len(p) > 1: l = al[p[0]] + " " + p[1].replace(", ", ",")
        body.append(l)
    mac = "".join(f".macro {n} a:vararg\n{op} \\a\n.endm\n" for op, n in al.items())
    head = open("cdna_kernels/" + NAME[:-7] + ".s.ref").read().split("; @launch")[0]
    doc = open("header.txt").read() if __import__("os").path.exists("header.txt") else ""
    txt = head + "; @launch grid=(256,1,1) block=(256,1,1) lds=163840\n" + doc
    txt += '.amdgcn_target "amdgcn-amd-amdhsa--gfx950"\n' + mac + f".text\n.globl {NAME}\n.p2align 8\n.type {NAME},@function\n{NAME}:\n"
    txt += "\n".join(body) + '\n.section .rodata,"a"\n.p2align 6\n' + kernel_desc(NAME, 512, 102, 256)
    return txt

if __name__ == "__main__":
    out = sys.argv[1] if len(sys.argv) > 1 else "cdna_kernels/" + NAME[:-7] + ".s"
    P = eval(sys.argv[2]) if len(sys.argv) > 2 else {}
    fake = int(sys.argv[3]) if len(sys.argv) > 3 else 0
    t = gen(P, fake); open(out, "w").write(t); print(out, len(t), "bytes")
```

```python
from asmlib import *
from layout import *
import math, struct
def fbits(x): return struct.unpack("<I", struct.pack("<f", x))[0]

S_W = 21
A_TASK = 22
A_T0, A_T1, A_T2 = 24, 25, 26
A_K, A_HEAD, A_SPIN, A_SL, A_LO = 27, 28, 29, 30, 31
A_ZL, A_ZH, A_RAW = 48, 49, 50
A_G0 = 32
A_WS = 36
A_XS = 40
A_OS = 44
S_DBG = 100
L16, LANE, TRA, TMP = 0, 1, 2, 4
XF = 16
ACC = 88
WF = 124
SLAB = 36864
LQ = 3 * SLAB
LO = LQ + 32768
OP = 1168
assert LO + 16 * OP <= 163840

def cvt(a, d, x, y): a(f"v_cvt_pk_bf16_f32 v{d}, v{x}, v{y}")
def m32(a, d, A, B, C="0"): a(f"v_mfma_f32_16x16x32_bf16 {v(d,4)}, {A}, {B}, {C}")

def skinny(a, tag, ptr_off):
    a(f"""
    s_load_dwordx2 s[{A_WS}:{A_WS+1}], s[0:1], {ptr_off}
    s_mul_i32 s{A_LO}, s{S_W}, 9216
    s_waitcnt lgkmcnt(0)
    s_mov_b32 s{A_WS+2}, 663552
    s_mov_b32 s{A_WS+3}, 0x20000
    """)
    def dma1(k, i):
        a(f"s_add_u32 m0, s{A_LO}, {(k % 3) * SLAB + i * 1024}\ns_add_u32 s{A_T0}, s{A_LO}, {k * SLAB + i * 1024}")
        a.vm(f"buffer_load_dwordx4 v{L16}, s[{A_WS}:{A_WS+3}], s{A_T0} offen lds", f"s{k}")
    a("s_barrier")
    for k in range(2):
        for i in range(9): dma1(k, i)
    for k in range(18):
        a.wv(f"s{k}")
        a("s_barrier")
        ad = TRA + (1 if k % 3 == 2 else 0); sb = (k % 3) * SLAB - (65536 if k % 3 == 2 else 0)
        def rd(t):
            for hf in range(2):
                a.ds(f"ds_read_b64_tr_b16 {v(WF + 4*t + 2*hf, 2)}, v{ad} offset:{sb + t*32 + hf*4*1152}", f"w{t}")
        for t in range(4): rd(t)
        for t in range(9):
            if k + 2 < 18: dma1(k + 2, t)
            if t + 4 < 9: rd(t + 4)
            a.wl(f"w{t}")
            m32(a, ACC + 4 * t, v(WF + 4 * t, 4), v(XF + 4 * k, 4), "0" if k == 0 else v(ACC + 4 * t, 4))

def lane_setup(a):
    T = TMP
    a(f"""
    s_load_dwordx2 s[{A_XS}:{A_XS+1}], s[0:1], 0
    v_lshrrev_b32 v{LANE}, 4, v{L16}
    v_and_b32 v{T}, 15, v{LANE}
    v_lshrrev_b32 v{T+1}, 4, v{LANE}
    s_movk_i32 s{A_T1}, 1152
    v_lshlrev_b32 v{T+2}, 4, v{T+1}
    v_mad_u32_u24 v{T+2}, v{T}, s{A_T1}, v{T+2}
    s_mul_i32 s{A_T2}, s{A_TASK}, {16*1152}
    s_mov_b64 s[{A_G0}:{A_G0+1}], 0xffff
    s_waitcnt lgkmcnt(0)
    s_mov_b32 s{A_XS+2}, 2359296
    s_mov_b32 s{A_XS+3}, 0x20000
    """)
    for k in range(18): a.vm(f"buffer_load_dwordx4 {v(XF+4*k,4)}, v{T+2}, s[{A_XS}:{A_XS+3}], s{A_T2} offen offset:{64*k}", "x")

def kvproj(a):
    tag = "a"; T = TMP
    a(f"""
    s_cmp_lt_u32 s{S_W}, 2
    s_cselect_b32 s{A_T0}, 16, 24
    s_load_dwordx2 s[{A_WS}:{A_WS+1}], s[0:1], s{A_T0}
    s_and_b32 s{A_K}, s{S_W}, 1
    s_mul_i32 s{A_K}, s{A_K}, 11264
    s_lshr_b32 s{A_LO}, s{S_W}, 1
    s_mul_i32 s{A_LO}, s{A_LO}, 22528
    s_waitcnt lgkmcnt(0)
    s_mov_b32 s{A_WS+2}, 20736
    s_mov_b32 s{A_WS+3}, 0x20000
    s_add_u32 s{A_SL}, s{A_LO}, s{A_K}
    """)
    for i in range(11):
        a(f"s_add_u32 m0, s{A_SL}, {i*1024}\ns_add_u32 s{A_T0}, s{A_K}, {i*1024}")
        a(f"buffer_load_dwordx4 v{L16}, s[{A_WS}:{A_WS+3}], s{A_T0} offen lds")
    lane_setup(a)
    GW = 160
    a(f"""
    s_and_b32 s{A_T0}, s{S_W}, 1
    s_lshl_b32 s{A_T0}, s{A_T0}, 4
    v_add_u32 v{T+3}, s{A_T0}, v{T}
    v_mul_u32_u24 v{T+4}, 288, v{T+1}
    v_min_u32 v{T+5}, 17, v{T+3}
    v_lshl_add_u32 v{T+4}, v{T+5}, 1, v{T+4}
    v_add_u32 v{T+4}, s{A_LO}, v{T+4}
    v_cmp_gt_u32 vcc, 18, v{T+3}
    v_cndmask_b32 v{T+5}, 0, -1, vcc
    s_waitcnt vmcnt(0)
    s_barrier
    """)
    a.vq = []
    def merge(k):
        a.wl(f"g{k}")
        for j in range(4):
            a(f"v_lshl_or_b32 v{GW + 4*k + j}, v{ACC + 8*(k & 1) + 2*j + 1}, 16, v{ACC + 8*(k & 1) + 2*j}\nv_and_b32 v{GW + 4*k + j}, v{GW + 4*k + j}, v{T+5}")
    for k in range(18):
        for e in range(8): a.ds(f"ds_read_u16 v{ACC + 8*(k & 1) + e}, v{T+4} offset:{32*36*k + 36*e}", f"g{k}")
        if k: merge(k - 1)
    merge(17)
    a(f"s_cmp_ge_u32 s{S_W}, 2\ns_cbranch_scc1 L{tag}_vp")
    for k in range(18): m32(a, ACC, v(GW + 4 * k, 4), v(XF + 4 * k, 4), "0" if k == 0 else v(ACC, 4))
    a(f"""
    s_cmp_eq_u32 s{S_W}, 1
    s_cselect_b64 vcc, s[{A_G0}:{A_G0+1}], 0
    v_cndmask_b32 v{ACC+2}, v{ACC+2}, 1.0, vcc
    s_lshl_b32 s{A_T0}, s{A_TASK}, 10
    s_lshl_b32 s{A_T1}, s{S_W}, 3
    s_add_u32 s{A_T0}, s{A_T0}, s{A_T1}
    s_add_u32 s{A_T0}, s{A_T0}, {AKF}
    s_branch L{tag}_kvs
    L{tag}_vp:
    """)
    for k in range(18): m32(a, ACC, v(XF + 4 * k, 4), v(GW + 4 * k, 4), "0" if k == 0 else v(ACC, 4))
    a(f"v_cmp_eq_u32 vcc, 18, v{T+3}")
    for r in range(4): a(f"v_cndmask_b32 v{ACC+r}, v{ACC+r}, 1.0, vcc")
    a(f"""
    s_lshr_b32 s{A_T0}, s{A_TASK}, 1
    s_lshl_b32 s{A_T0}, s{A_T0}, 11
    s_and_b32 s{A_T1}, s{A_TASK}, 1
    s_lshl_b32 s{A_T1}, s{A_T1}, 3
    s_add_u32 s{A_T0}, s{A_T0}, s{A_T1}
    s_and_b32 s{A_T1}, s{S_W}, 1
    s_lshl_b32 s{A_T1}, s{A_T1}, 10
    s_add_u32 s{A_T0}, s{A_T0}, s{A_T1}
    s_add_u32 s{A_T0}, s{A_T0}, {AVF}
    L{tag}_kvs:
    """)
    cvt(a, ACC, ACC, ACC + 1); cvt(a, ACC + 1, ACC + 2, ACC + 3)
    a(f"""
    buffer_store_dwordx2 {v(ACC,2)}, v{L16}, s[8:11], s{A_T0} offen sc1
    s_waitcnt vmcnt(0) lgkmcnt(0)
    s_barrier
    s_cmp_lg_u32 s{S_W}, 0
    s_cbranch_scc1 L{tag}_nosig
    v_mov_b32 v{T+5}, 0
    v_mov_b32 v{T+6}, 1
    s_mov_b64 exec, 1
    global_atomic_add v{T+5}, v{T+6}, s[{S_DBG}:{S_DBG+1}] offset:{D_AKV*4}
    s_mov_b64 exec, -1
    s_waitcnt vmcnt(0)
    L{tag}_nosig:
    """)

def task(a, Lend, tl=lambda i: None):
    tag = "a"
    T = TMP
    a(f"""
    s_load_dwordx2 s[{A_OS}:{A_OS+1}], s[0:1], 96
    s_mov_b32 s{A_SPIN}, 0
    """)
    lane_setup(a)
    a(f"""
    s_mov_b32 s{A_OS+2}, 4718592
    s_mov_b32 s{A_OS+3}, 0x20000
    v_mov_b64 {v(ACC,2)}, 0
    v_mov_b64 {v(ACC+2,2)}, 0
    s_lshl_b32 s{A_T0}, s{S_W}, 13
    s_add_u32 s{A_T0}, s{A_T0}, {LQ}
    v_add_u32 v{T+5}, s{A_T0}, v{L16}
    """)
    for i in range(8): a(f"ds_write_b128 v{T+5}, {v(ACC,4)} offset:{i*1024}")
    a(f"""
    s_waitcnt lgkmcnt(0)
    v_bfe_u32 v{T+3}, v{LANE}, 2, 2
    v_lshl_add_u32 v{T+3}, v{T+1}, 3, v{T+3}
    s_movk_i32 s{A_T1}, 1152
    v_and_b32 v{T+4}, 3, v{LANE}
    v_lshlrev_b32 v{T+4}, 3, v{T+4}
    v_mad_u32_u24 v{TRA}, v{T+3}, s{A_T1}, v{T+4}
    s_mul_i32 s{A_T0}, s{S_W}, 288
    v_add_u32 v{TRA}, s{A_T0}, v{TRA}
    v_add_u32 v{TRA+1}, 65536, v{TRA}
    """)
    tl(4)
    skinny(a, "aq", 8)
    tl(5)
    cb = fbits((18 ** -0.5) * math.log2(math.e))
    a(f"""
    s_mul_i32 s{A_T0}, s{S_W}, 144
    v_lshl_add_u32 v{T+2}, v{T+1}, 2, s{A_T0}
    v_lshlrev_b32 v{T+3}, 4, v{T}
    v_add_u32 v{T+3}, {LQ}, v{T+3}
    s_mov_b32 s{A_T1}, {cb}
    s_movk_i32 s{A_T2}, 3641
    """)
    for t in range(9):
        for r in range(4):
            x = ACC + 4 * t + r
            a(f"""
            v_add_u32 v{T+4}, {16*t + r}, v{T+2}
            v_mul_u32_u24 v{T+5}, s{A_T2}, v{T+4}
            v_lshrrev_b32 v{T+5}, 16, v{T+5}
            v_mul_u32_u24 v{T+6}, 18, v{T+5}
            v_sub_u32 v{T+4}, v{T+4}, v{T+6}
            v_lshl_add_u32 v{T+5}, v{T+5}, 10, v{T+3}
            v_bfe_u32 v{T+6}, v{T+4}, 2, 2
            v_lshl_add_u32 v{T+5}, v{T+6}, 8, v{T+5}
            v_and_b32 v{T+6}, 3, v{T+4}
            v_lshl_add_u32 v{T+5}, v{T+6}, 1, v{T+5}
            v_lshrrev_b32 v{T+4}, 4, v{T+4}
            v_lshl_add_u32 v{T+5}, v{T+4}, 3, v{T+5}
            v_mul_f32 v{x}, s{A_T1}, v{x}
            v_cvt_pk_bf16_f32 v{x}, v{x}, v{x}
            ds_write_b16 v{T+5}, v{x}
            """)
    tl(6)
    a(f"v_mov_b32 v{T+5}, 0\ns_cmp_lg_u32 s{S_W}, 0\ns_cbranch_scc1 L{tag}_kvb\ns_mov_b64 exec, 1")
    a.label(f"L{tag}_kvw")
    a(f"""
    global_load_dword v{T+6}, v{T+5}, s[{S_DBG}:{S_DBG+1}] offset:{D_AKV*4} sc1
    s_add_u32 s{A_SPIN}, s{A_SPIN}, 1
    s_cmp_gt_u32 s{A_SPIN}, 2000000
    s_cbranch_scc1 {Lend}
    s_waitcnt vmcnt(0)
    v_cmp_gt_u32 vcc, 128, v{T+6}
    s_cbranch_vccz L{tag}_kvk
    s_sleep 16
    s_branch L{tag}_kvw
    L{tag}_kvk:
    s_mov_b64 exec, -1
    L{tag}_kvb:
    s_barrier
    s_lshl_b32 s{A_T0}, s{S_W}, 15
    s_add_u32 s{A_T1}, s{A_T0}, {AVF}
    s_add_u32 s{A_T0}, s{A_T0}, {AKF}
    """)
    for m, sr in ((0, A_T0), (1, A_T1)):
        for i in range(32):
            a(f"buffer_load_dwordx4 {ag(128*m + 4*i, 4)}, v{L16}, s[8:11], s{sr} offen offset:{(i & 3)*1024} sc1")
            if i & 3 == 3: a(f"s_add_u32 s{sr}, s{sr}, 4096")
        if m == 0: a("s_waitcnt vmcnt(16)")
    QA_, PA_, RA_, OA_ = 12, 13, 14, 15
    a(f"""
    v_add_u32 v{QA_}, {LQ}, v{L16}
    s_lshl_b32 s{A_T0}, s{S_W}, 11
    v_add_u32 v{PA_}, s{A_T0}, v{L16}
    s_lshl_b32 s{A_T0}, s{S_W}, 13
    v_add_u32 v{RA_}, s{A_T0}, v{L16}
    s_movk_i32 s{A_T1}, {OP}
    v_lshlrev_b32 v{T+2}, 3, v{T+1}
    v_mad_u32_u24 v{OA_}, v{T}, s{A_T1}, v{T+2}
    s_mul_i32 s{A_T0}, s{S_W}, 36
    s_add_u32 s{A_T0}, s{A_T0}, {LO}
    v_add_u32 v{OA_}, s{A_T0}, v{OA_}
    s_mov_b32 s{A_HEAD}, 0
    s_mov_b32 s{A_ZL}, {fbits(2.0**-60)}
    s_mov_b32 s{A_ZH}, {fbits(2.0**60)}
    s_mov_b64 s[{A_RAW}:{A_RAW+1}], s[{A_G0}:{A_G0+1}]
    s_waitcnt vmcnt(0) lgkmcnt(0)
    s_barrier
    """)
    tl(7)
    Q, O0, O1, MX, PQ = 16, 20, 24, 28, 32
    SD = 40
    a.label(f"L{tag}_grp")
    a(f"s_mov_b32 s{A_K}, 0")
    a.label(f"L{tag}_head")
    a(f"ds_read_b128 {v(Q,4)}, v{QA_}\nv_add_u32 v{QA_}, 1024, v{QA_}\ns_waitcnt lgkmcnt(0)")
    def kf(j): return ag(4 * j, 4)
    def vf(b, ft): return ag(128 + 8 * b + 4 * ft, 4)
    a(f"v_mov_b32 v{MX}, 0")
    a.label(f"L{tag}_p2")
    def S(b):
        for i in range(2): m32(a, SD + 8 * (b % 4) + 4 * i, kf(2 * b + i), v(Q, 4))
    S(0); S(1)
    for b in range(16):
        d = SD + 8 * (b % 4); p = PQ + 4 * (b & 1)
        seq = []
        if b + 2 < 16: seq += [lambda i=i: m32(a, SD + 8 * ((b + 2) % 4) + 4 * i, kf(2 * (b + 2) + i), v(Q, 4)) for i in range(2)]
        if b > 0:
            pp = PQ + 4 * ((b - 1) & 1)
            seq += [lambda ft=ft: m32(a, (O0, O1)[ft], vf(b - 1, ft), v(pp, 4), "0" if b == 1 else v((O0, O1)[ft], 4)) for ft in range(2)]
        for e in range(8):
            if e % 2 == 0 and seq: seq.pop(0)()
            a(f"v_exp_f32 v{d+e}, v{d+e}")
            if e % 2 == 1 and e > 1: cvt(a, p + (e >> 1) - 1, d + e - 3, d + e - 2)
        cvt(a, p + 3, d + 6, d + 7)
    for ft in range(2): m32(a, (O0, O1)[ft], vf(15, ft), v(PQ + 4, 4), v((O0, O1)[ft], 4))
    a(f"""
    v_cmp_nlt_f32 vcc, s{A_ZL}, v{O1+2}
    v_cmp_ngt_f32 s[{A_T0}:{A_T0+1}], s{A_ZH}, v{O1+2}
    v_mov_b32 v{O1+3}, v{MX}
    s_or_b64 vcc, vcc, s[{A_T0}:{A_T0+1}]
    s_and_b64 vcc, vcc, s[{A_RAW}:{A_RAW+1}]
    s_cbranch_scc1 L{tag}_p1
    s_mov_b64 s[{A_RAW}:{A_RAW+1}], s[{A_G0}:{A_G0+1}]
    ds_write_b128 v{PA_}, {v(O0,4)}
    ds_write_b128 v{PA_}, {v(O1,4)} offset:1024
    v_add_u32 v{PA_}, 8192, v{PA_}
    s_add_u32 s{A_K}, s{A_K}, 1
    s_cmp_lt_u32 s{A_K}, 4
    s_cbranch_scc1 L{tag}_head
    s_waitcnt lgkmcnt(0)
    s_barrier
    v_and_b32 v{T+2}, 0xfffffcff, v{RA_}
    """)
    PO, PZ = 40, 56
    for i in range(4):
        a(f"ds_read_b128 {v(PO+4*i,4)}, v{RA_} offset:{i*2048}\nds_read_b128 {v(PZ+4*i,4)}, v{T+2} offset:{i*2048 + 1024}")
    a(f"""
    s_waitcnt lgkmcnt(0)
    v_min3_f32 v{MX}, v{PZ+3}, v{PZ+7}, v{PZ+11}
    v_min_f32 v{MX}, v{MX}, v{PZ+15}
    """)
    for i in range(4): a(f"v_sub_f32 v{PZ+4*i+3}, v{MX}, v{PZ+4*i+3}\nv_exp_f32 v{PZ+4*i+3}, v{PZ+4*i+3}")
    for r in range(4): a(f"v_mul_f32 v{PO+r}, v{PO+r}, v{PZ+3}")
    for r in range(3): a(f"v_mul_f32 v{PZ+r}, v{PZ+r}, v{PZ+3}")
    for i in range(1, 4):
        for r in range(4): a(f"v_fmac_f32 v{PO+r}, v{PO+4*i+r}, v{PZ+4*i+3}")
        for r in range(3): a(f"v_fmac_f32 v{PZ+r}, v{PZ+4*i+r}, v{PZ+4*i+3}")
    a(f"v_rcp_f32 v{PZ+2}, v{PZ+2}")
    for r in range(4): a(f"v_mul_f32 v{PO+r}, v{PO+r}, v{PZ+2}")
    for r in range(2): a(f"v_mul_f32 v{PZ+r}, v{PZ+r}, v{PZ+2}")
    cvt(a, PO, PO, PO + 1); cvt(a, PO + 1, PO + 2, PO + 3); cvt(a, PZ, PZ, PZ + 1)
    a(f"""
    ds_write_b32 v{OA_}, v{PO}
    ds_write_b32 v{OA_}, v{PO+1} offset:4
    s_mov_b64 exec, s[{A_G0}:{A_G0+1}]
    ds_write_b32 v{OA_}, v{PZ} offset:32
    s_mov_b64 exec, -1
    v_add_u32 v{OA_}, 144, v{OA_}
    v_xor_b32 v{RA_}, 32768, v{RA_}
    v_and_b32 v{PA_}, 65535, v{PA_}
    s_add_u32 s{A_HEAD}, s{A_HEAD}, 4
    s_cmp_lt_u32 s{A_HEAD}, 32
    s_cbranch_scc1 L{tag}_grp
    s_waitcnt lgkmcnt(0)
    s_barrier
    s_movk_i32 s{A_T1}, {OP}
    v_lshlrev_b32 v{T+2}, 4, v{T+1}
    v_mad_u32_u24 v{T+2}, v{T}, s{A_T1}, v{T+2}
    v_add_u32 v{T+2}, {LO}, v{T+2}
    """)
    for k in range(18): a(f"ds_read_b128 {v(XF+4*k,4)}, v{T+2} offset:{64*k}")
    a("s_waitcnt lgkmcnt(0)")
    tl(8)
    skinny(a, "ao", 32)
    a(f"""
    s_movk_i32 s{A_T1}, 2304
    v_lshlrev_b32 v{T+2}, 3, v{T+1}
    v_mad_u32_u24 v{T+2}, v{T}, s{A_T1}, v{T+2}
    s_mul_i32 s{A_T0}, s{A_TASK}, {16*2304}
    s_mul_i32 s{A_T1}, s{S_W}, 288
    s_add_u32 s{A_T0}, s{A_T0}, s{A_T1}
    """)
    for t in range(9):
        d = ACC + 4 * t
        cvt(a, d, d, d + 1); cvt(a, d + 1, d + 2, d + 3)
        a(f"buffer_store_dwordx2 {v(d,2)}, v{T+2}, s[{A_OS}:{A_OS+3}], s{A_T0} offen offset:{32*t}")
    a(f"s_waitcnt vmcnt(0)\ns_branch L{tag}_fin")
    a.label(f"L{tag}_p1")
    a(f"s_mov_b64 s[{A_RAW}:{A_RAW+1}], 0")
    LAG = 3
    for j in range(32 + LAG):
        if j < 32: m32(a, SD + 4 * (j % 8), kf(j), v(Q, 4))
        if j >= LAG:
            d = SD + 4 * ((j - LAG) % 8); mx = MX + ((j - LAG) & 1)
            if j - LAG < 2: a(f"v_max3_f32 v{mx}, v{d}, v{d+1}, v{d+2}\nv_max_f32 v{mx}, v{mx}, v{d+3}")
            else: a(f"v_max3_f32 v{mx}, v{mx}, v{d}, v{d+1}\nv_max3_f32 v{mx}, v{mx}, v{d+2}, v{d+3}")
    a(f"""
    v_max_f32 v{MX}, v{MX}, v{MX+1}
    v_mov_b32 v{MX+1}, v{MX}
    v_permlane16_swap_b32 v{MX}, v{MX+1}
    v_max_f32 v{MX}, v{MX}, v{MX+1}
    v_mov_b32 v{MX+1}, v{MX}
    v_permlane32_swap_b32 v{MX}, v{MX+1}
    v_max_f32 v{MX}, v{MX}, v{MX+1}
    v_cvt_pk_bf16_f32 v{MX}, -v{MX}, 0
    v_cndmask_b32 v{Q+3}, 0, v{MX}, s[{A_G0}:{A_G0+1}]
    v_lshlrev_b32 v{MX}, 16, v{MX}
    """)
    a(f"s_branch L{tag}_p2")
    a.label(f"L{tag}_fin")
```

```python
from asmlib import *
from layout import *
import math, struct

def fbits(x): return struct.unpack("<I", struct.pack("<f", x))[0]

L16, IDX, TSEL, AW, PFD, MEMA, SWA = 0, 1, 2, 4, 5, 6, 7
KX0, KX1 = 8, 12
V0, V1 = 16, 22
QA, QB, KA, KB, VA, VB, R0, R1, R2, W0, W1 = 28, 32, 36, 40, 44, 48, 52, 56, 60, 64, 72
WREG0 = 80
LW = 0
LMEM = 147456
LSX = LMEM + 8192
LST = LSX + 4096
assert LST + 4096 == 163840
S_H, S_W = 20, 21
S_T0, S_T1, S_T2 = 22, 23, 24
S_STEP = 25
S_AST, S_AST2, S_AST1 = 26, 27, 28
S_RLD = 29
S_RST, S_BCL = 33, 34
S_BP = 35
S_KV, S_KV2, S_PUB = 38, 39, 40
S_RHO = 41
S_C = 42
S_HI8 = 44
S_SPIN = 46
S_BSL = 47
S_ONE = 48
S_DBG = 100
S_BC2 = 52
S_HST = 53
S_RDY, S_PF = 4, 5
S_ZLO, S_ZHI = 54, 55
S_TM = 56
S_9216 = 77
S_ASL = 78
S_BA = 79
S_BR = 7
S_TAG = 76
S_ACLX = 76
S_MK = 12

HALF_RES = [("K", p) for p in range(9)] + [("V", 8), ("V", 7), ("O", (0, 1))]
RES_HALF = {x: 1 for x in HALF_RES}
FULL_RES = [("O", (0, 0)), ("O", (1, 1)), ("S", 0)]

def chunk_of(w, p):
    e = [(w + k) % 4 for k in (1, 2, 3)]
    return ([w] + e + [8, w + 4] + [c + 4 for c in e])[p]

class WMap:
    def __init__(self):
        units = [(m, u) for m in "QKV" for u in range(9)] + [("O", (p, u)) for p in range(4) for u in range(2)] + [("S", 0)]
        full = [x for x in units if x not in HALF_RES and x not in FULL_RES]
        self.order = full + HALF_RES + FULL_RES
        self.loc = {}; self.lds = {}
        n = 0
        for x in self.order:
            for half in range(2):
                if x in FULL_RES: self.lds[(x, half)] = (6 + FULL_RES.index(x)) * 4096 + half * 2048
                elif x in HALF_RES and half == RES_HALF[x]: self.lds[(x, half)] = HALF_RES.index(x) * 2048
                else:
                    self.loc[(x, half)] = v(WREG0 + 8 * n, 8) if n < 22 else ag(8 * (n - 22), 8)
                    n += 1
        assert n == 54
        first = [("K", c) for c in range(9)] + [("V", c) for c in range(4, 8)] + [("O", (0, 1))]
        self.order = first + [x for x in units if x not in first and x not in FULL_RES] + FULL_RES
        self.ldsw = []
        first_write = {}
        for w in range(4):
            m = {k: o for k, o in self.lds.items() if k[0] in FULL_RES}; f = 0
            for n, x in enumerate(first):
                u = self.pos(w, x)
                if u in HALF_RES:
                    m[(u, RES_HALF[u])] = f * 2048
                    first_write[f >> 1] = min(first_write.get(f >> 1, 99), n); f += 1
            assert f == 12
            self.ldsw.append(m)
        N = len(self.order); self.raw = [None] * N; self.issue_at = [None] * N
        busy = {}
        def dead_from(slot):
            if slot == 9: return 99
            if slot >= 6: return self.order.index(FULL_RES[slot - 6])
            return first_write[slot]
        nxt = 0
        for c in range(N):
            while nxt < N and nxt < c + 9:
                x = self.order[nxt]
                if x in FULL_RES: cand = [6 + FULL_RES.index(x)]
                else: cand = [s_ for s_ in range(10) if dead_from(s_) > nxt or (dead_from(s_) == nxt and s_ < 6)]
                cand = [s_ for s_ in cand if s_ not in busy]
                if not cand: break
                s_ = min(cand, key=dead_from)
                busy[s_] = nxt; self.raw[nxt] = s_; self.issue_at[nxt] = c; nxt += 1
            assert self.raw[c] is not None
            del busy[self.raw[c]]
    def pos(self, w, x): return (x[0], [p for p in range(9) if chunk_of(w, p) == x[1]][0]) if x[0] in "QKV" else x
    def reg(self, unit, half): return self.loc[(unit, half)]
    def regpair(self, unit, half, jj):
        t = self.loc[(unit, half)]; p = t[0]; b = int(t[2:t.index(":")])
        return f"{p}[{b+2*jj}:{b+2*jj+1}]"

WM = WMap()

def smf(a, d, A, B): a(f"v_smfmac_f32_16x16x64_bf16 {v(d,4)}, {v(A,4)}, {B}, {v(IDX)}")
def zero(a, q): a(f"v_mov_b64 {v(q,2)}, 0\nv_mov_b64 {v(q+2,2)}, 0")
def cvt(a, d, x, y): a(f"v_cvt_pk_bf16_f32 v{d}, v{x}, v{y}")
def loadW(a, unit, half, dst, tag):
    off = WM.lds[(unit, half)]
    a.ds(f"ds_read_b128 {v(dst,4)}, v{AW} offset:{off}", tag)
    a.ds(f"ds_read_b128 {v(dst+4,4)}, v{AW} offset:{off+1024}", tag)
NST = 9
def stamp(a, P, i):
    if P.get("stamp") and (i in P.get("only", range(8))):
        if "only" in P and len(P["only"]) == 2: i = list(P["only"]).index(i)
        a(f"{'s_memrealtime' if P['stamp'] == 2 else 's_memtime'} s[{S_TM+2*i}:{S_TM+2*i+1}]")

def mem0_load(a):
    LANE = 79
    a(f"""
    s_load_dwordx2 s[88:89], s[0:1], 48
    v_and_b32 v8, 7, v{LANE}
    s_movk_i32 s92, 1152
    v_lshrrev_b32 v9, 4, v{LANE}
    v_lshlrev_b32 v9, 5, v9
    v_mad_u32_u24 v8, v8, s92, v9
    s_min_u32 s92, s{S_H}, 8
    s_lshl_b32 s92, s92, 7
    s_waitcnt lgkmcnt(0)
    s_mov_b32 s90, 9216
    s_mov_b32 s91, 0x20000
    """)
    for hf in range(2): a.vm(f"buffer_load_dwordx4 {v(12 + 4*hf, 4)}, v8, s[88:91], s92 offen offset:{16*hf}", "m0")
def mem0_store(a):
    LANE = 79
    a(f"""
    v_bfe_u32 v9, v{LANE}, 3, 1
    v_mov_b32 v10, 0x05040100
    v_mov_b32 v11, 0x07060302
    v_cmp_eq_u32 vcc, 1, v9
    v_cndmask_b32 v10, v10, v11, vcc
    v_and_b32 v11, 0x33f, v{L16}
    v_lshl_or_b32 v11, v9, 6, v11
    v_bfe_u32 v9, v{L16}, 6, 1
    v_lshl_or_b32 v11, v9, 7, v11
    s_cmp_lt_u32 s{S_H}, 9
    s_cselect_b32 s93, 0, 0x80000000
    s_lshl_b32 s92, s{S_H}, 10
    s_add_u32 s93, s93, s92
    """)
    a.wv("m0")
    for j in range(4): a(f"v_perm_b32 v{12+j}, v{13+2*j}, v{12+2*j}, v10\nv_min_u32 v{12+j}, -2, v{12+j}")
    for base in (MBB, HIST):
        a(f"s_add_u32 s92, s93, {base}")
        a.vm(f"buffer_store_dwordx4 v[12:15], v11, s[8:11], s92 offen sc1", "x")
def warm_mail(a):
    a(f"v_lshlrev_b32 v24, 2, v{L16}\ns_mul_i32 s93, s{S_H}, 9216")
    for sl in range(2):
        for off in (0, 4096, 5120):
            a(f"s_add_u32 s92, s93, {MBA + sl*MBA_SLOT + off}")
            a.vm("buffer_load_dword v25, v24, s[8:11], s92 offen sc1", "x")
    a(f"s_lshl_b32 s92, s{S_H}, 11\ns_add_u32 s92, s92, {MBB + 16384}")
    a.vm("buffer_load_dword v25, v24, s[8:11], s92 offen sc1", "x")
def warm_code(a, w):
    a(f"v_lshlrev_b32 v26, 2, v{L16}\ns_getpc_b64 s[88:89]\nLc{w}_pc:\ns_add_u32 s88, s88, Lc{w}f_top-Lc{w}_pc\ns_addc_u32 s89, s89, 0\nv_add_u32 v27, 4096, v26")
    a.vm("global_load_dword v26, v26, s[88:89]", "x")
    a.vm("global_load_dword v27, v27, s[88:89]", "x")

def prologue(a, w, P, hooks=None):
    T = 28; LANE = 79
    DQ, DO, DS_ = 78, 77, 76
    TQ, TV, TO, TS = 72, 68, 64, 60
    AP, MP = 36864, 4096
    base = LW + w * AP
    misc = LMEM + w * MP
    GB, RR, CC = T + 2, T + 3, T + 4
    a(f"""
    v_lshrrev_b32 v{LANE}, 4, v{L16}
    v_lshrrev_b32 v{T}, 4, v{LANE}
    v_and_b32 v{T+1}, 0xf0, v{L16}
    v_lshl_add_u32 v{DQ}, v{T}, 13, v{T+1}
    s_lshl_b32 s{S_T0}, s{S_H}, 8
    v_add_u32 v{DQ}, s{S_T0}, v{DQ}
    s_movk_i32 s{S_T1}, 1152
    v_mad_u32_u24 v{DO}, v{T}, s{S_T1}, v{T+1}
    s_mul_i32 s{S_T0}, s{S_H}, 147456
    v_add_u32 v{DO}, s{S_T0}, v{DO}
    v_lshrrev_b32 v{T}, 3, v{LANE}
    v_and_b32 v{T+1}, 0x70, v{L16}
    v_mad_u32_u24 v{DS_}, v{T}, s{S_T1}, v{T+1}
    v_add_u32 v{DS_}, s{S_T0}, v{DS_}
    v_lshrrev_b32 v{GB}, 4, v{LANE}
    v_bfe_u32 v{RR}, v{LANE}, 2, 2
    v_and_b32 v{CC}, 3, v{LANE}
    v_add_u32 v{AW}, {base}, v{L16}
    v_and_b32 v{T}, 1, v{GB}
    v_lshl_add_u32 v{T}, v{T}, 3, v{RR}
    v_lshlrev_b32 v{T}, 8, v{T}
    v_add_u32 v{T}, {w*64}, v{T}
    v_lshl_add_u32 v{TV}, v{CC}, 3, v{T}
    v_lshrrev_b32 v{T+1}, 1, v{CC}
    v_lshl_add_u32 v{T}, v{T+1}, 5, v{T}
    v_and_b32 v{T+1}, 1, v{CC}
    v_lshl_add_u32 v{TQ}, v{T+1}, 3, v{T}
    v_lshrrev_b32 v{T+5}, 1, v{GB}
    v_lshrrev_b32 v{T+1}, 1, v{RR}
    v_lshl_add_u32 v{T}, v{T+5}, 2, v{T+1}
    v_and_b32 v{T+1}, 1, v{RR}
    v_lshlrev_b32 v{T+6}, 3, v{CC}
    v_lshl_add_u32 v{TO}, v{T}, 8, v{T+6}
    v_lshl_add_u32 v{TO}, v{T+1}, 5, v{TO}
    v_add_u32 v{TO}, {w*64}, v{TO}
    v_and_b32 v{T+7}, 1, v{GB}
    v_lshl_add_u32 v{T}, v{T+7}, 4, v{T}
    v_lshl_add_u32 v{TS}, v{T}, 7, v{T+6}
    v_add_u32 v{TS}, {w*32}, v{TS}
    s_mov_b32 s{S_T0}, {AP}
    s_movk_i32 s{S_T1}, {MP}
    """)
    for t, sel in ((TQ, T + 5), (TV, T + 5), (TO, T + 7), (TS, T + 1)):
        a(f"v_mad_u32_u24 v{t+2}, v{sel}, s{S_T1}, v{t}\nv_add_u32 v{t+2}, {LMEM}, v{t+2}\nv_add_u32 v{t+3}, {2*MP}, v{t+2}")
        a(f"v_mad_u32_u24 v{t}, v{sel}, s{S_T0}, v{t}\nv_add_u32 v{t+1}, {2*AP}, v{t}")
    ptr = {"Q": 56, "K": 64, "V": 72, "O": 80}
    srd = {"Q": 60, "K": 64, "V": 68, "O": 72, "S": 72}
    for m in "QKVO": a(f"s_load_dwordx2 s[{srd[m]}:{srd[m]+1}], s[0:1], {ptr[m]}")
    a("s_waitcnt lgkmcnt(0)")
    for m in "QKVO": a(f"s_mov_b32 s{srd[m]+2}, 4718592\ns_mov_b32 s{srd[m]+3}, 0x20000")
    cb = fbits((128 ** -0.5) * math.log2(math.e))
    a(f"s_mov_b32 s{S_C}, {cb}\ns_mov_b32 s{S_C+1}, {cb}")
    def issue(n):
        m, x = WM.order[n]; rs = WM.raw[n]
        for i in range(4):
            if m in "QKV": so = (64 * x + 16 * w + 4 * i) * 8192; vo = DQ
            elif m == "O": so = (64 * x[1] + 16 * w + 4 * i) * 1152 + x[0] * 256; vo = DO
            else: so = (32 * w + 8 * i) * 1152 + 1024; vo = DS_
            a(f"s_mov_b32 m0, {(misc if rs == 9 else base + rs * 4096) + i * 1024}")
            a(f"s_mov_b32 s{S_T0}, {so}")
            a.vm(f"buffer_load_dwordx4 v{vo}, s[{srd[m]}:{srd[m]+3}], s{S_T0} offen lds", f"u{n}")
    def consume(n):
        m, x = WM.order[n]; rs = WM.raw[n]
        unit = WM.pos(w, (m, x)); WM.lds = WM.ldsw[w]
        sb = 0 if rs == 9 else rs * 4096; am = 2 if rs == 9 else 0
        a.wv(f"u{n}")
        a("s_barrier")
        for k in range(36):
            if WM.issue_at[k] == n and n > 0: issue(k)
        for half in range(2):
            for jj in range(4):
                if m in "QK": ad, off = TQ + (jj >> 1), sb + 4 * (jj & 1) * 256 + 16 * half
                elif m == "V": ad, off = TV + (jj >> 1), sb + 4 * (jj & 1) * 256 + 32 * half
                elif m == "O": ad, off = TO + half, sb + (8 * (jj >> 1) + 2 * (jj & 1)) * 256
                else: ad, off = TS + half, sb + (8 * (jj >> 1) + 2 * (jj & 1)) * 128
                dst = v(40 + half * 8 + 2 * jj, 2) if (unit, half) in WM.lds else WM.regpair(unit, half, jj)
                a.ds(f"ds_read_b64_tr_b16 {dst}, v{ad+am} offset:{off}", "tr")
        a.wl0()
        if m == "Q":
            for half in range(2):
                t = WM.reg(unit, half); assert t[0] == "v"; b0 = int(t[2:t.index(":")])
                for j in range(8):
                    a(f"v_lshlrev_b32 v40, 16, v{b0+j}\nv_and_b32 v41, 0xffff0000, v{b0+j}\nv_pk_mul_f32 v[40:41], v[40:41], s[{S_C}:{S_C+1}]\nv_cvt_pk_bf16_f32 v{b0+j}, v40, v41")
        wrote = False
        if n < 14 or n >= 33: a("s_barrier")
        for half in range(2):
            if (unit, half) in WM.lds:
                for q in range(2):
                    a.ds(f"ds_write_b128 v{AW}, {v(40+8*half+4*q,4)} offset:{WM.lds[(unit,half)] + q*1024}", "tw")
                wrote = True
        if wrote: a.wl0()
    for n in range(36):
        if WM.issue_at[n] == 0: issue(n)
    for c in range(36):
        consume(c)
        if hooks and c in hooks: hooks[c]()
    a.wv0()
    a("s_barrier")
    if hooks: hooks["end"]()
    if not hooks and w == 0: mem0_load(a); mem0_store(a); a.wv0()
    a(f"v_bfe_u32 v{T+1}, v{LANE}, 3, 1\nv_cmp_eq_u32 vcc, 1, v{T+1}")
    Q1, Q2, Q3, Q4 = 36, 40, 44, 48
    a(f"""
    v_mov_b32 v{IDX}, 0x8888
    v_mov_b32 v{T}, 0xdddd
    v_cndmask_b32 v{IDX}, v{IDX}, v{T}, vcc
    v_and_b32 v{T}, 7, v{LANE}
    v_bfe_u32 v{T+1}, v{LANE}, 4, 1
    v_lshlrev_b32 v{T+1}, 2, v{T+1}
    v_sub_u32 v{T}, v{T}, v{T+1}
    v_and_b32 v{T+1}, 1, v{T}
    v_lshlrev_b32 v{T+1}, 4, v{T+1}
    v_mov_b32 v{T+2}, 0x3f80
    v_lshlrev_b32 v{T+2}, v{T+1}, v{T+2}
    v_ashrrev_i32 v{T}, 1, v{T}
    v_cmp_eq_u32 vcc, 0, v{T}
    v_cndmask_b32 v{TSEL}, 0, v{T+2}, vcc
    v_cmp_eq_u32 vcc, 1, v{T}
    v_cndmask_b32 v{TSEL+1}, 0, v{T+2}, vcc
    v_add_u32 v{MEMA}, {LMEM}, v{L16}
    v_bfe_u32 v{T}, v{L16}, 8, 1
    v_and_b32 v{T+1}, 0x70, v{L16}
    v_lshrrev_b32 v{SWA}, 5, v{L16}
    v_and_b32 v{SWA}, 0x18, v{SWA}
    v_lshl_add_u32 v{SWA}, v{T+1}, 1, v{SWA}
    v_add_u32 v{SWA}, {LSX + w*1040}, v{SWA}
    s_movk_i32 s{S_T1}, 9216
    v_lshrrev_b32 v{Q1}, 7, v{L16}
    v_mad_u32_u24 v{Q1}, v{Q1}, s{S_T1}, v{T+1}
    v_lshl_or_b32 v{Q1+1}, v{T}, 3, v{T+1}
    v_lshrrev_b32 v{T+2}, 9, v{L16}
    v_lshl_or_b32 v{Q1+1}, v{T+2}, 2, v{Q1+1}
    v_bfe_u32 v{T+3}, v{L16}, 7, 1
    v_lshl_or_b32 v{Q1+1}, v{T+3}, 31, v{Q1+1}
    v_and_b32 v{Q1+2}, 0x33f, v{L16}
    v_lshl_or_b32 v{Q1+2}, v{T+3}, 6, v{Q1+2}
    v_bfe_u32 v{T+4}, v{L16}, 6, 1
    v_lshl_or_b32 v{Q1+2}, v{T+4}, 7, v{Q1+2}
    v_bfe_u32 v{Q1+3}, v{L16}, 1, 8
    v_lshl_or_b32 v{Q1+3}, v{T+2}, 2, v{Q1+3}
    v_and_b32 v{T}, 16, v{L16}
    v_mov_b32 v{T+2}, 0x3f80
    v_lshlrev_b32 v{T+2}, v{T}, v{T+2}
    v_bfe_u32 v{T}, v{L16}, 5, 2
    """)
    a(f"v_bfe_u32 v{T}, v{L16}, 5, 3")
    for j in range(4): a(f"v_cmp_eq_u32 vcc, {j}, v{T}\nv_cndmask_b32 v{Q2+j}, 0, v{T+2}, vcc")
    for j in range(4): a(f"v_cmp_eq_u32 vcc, {j+4}, v{T}\nv_cndmask_b32 v{Q4+j}, 0, v{T+2}, vcc")
    a(f"""
    v_lshrrev_b32 v{T}, 8, v{L16}
    v_lshl_or_b32 v{T}, v{T}, 7, v{T+1}
    v_add_u32 v{Q3+1}, {LMEM + 4096}, v{T}
    v_lshl_add_u32 v{Q3}, v{T+3}, 3, v{Q3+1}
    v_lshl_add_u32 v{Q3+2}, v{T+3}, 9, v{Q3+1}
    v_lshrrev_b32 v{Q3+3}, 1, v{L16}
    """)
    if w == 0:
        for i, q in ((1, Q2), (2, Q3), (3, Q4)):
            a.ds(f"ds_write_b128 v{MEMA}, {v(q,4)} offset:{LST - LMEM + i*1024}", "st")
        a.wl0()
    a(f"""
    s_mov_b32 s{S_HI8}, 0xff00ff00
    s_mov_b32 s{S_HI8+1}, 0xff00ff00
    s_mov_b32 s{S_ONE}, 0x3e803e80
    s_mov_b32 s{S_ONE+1}, 0x3e803e80
    s_mov_b32 s{S_ONE+2}, 0x3f803f80
    s_mov_b32 s{S_ONE+3}, 0x3f803f80
    s_mov_b32 s{S_ZLO}, {fbits(2.0**-60)}
    s_mov_b32 s{S_ZHI}, {fbits(2.0**60)}
    s_mov_b32 s{S_STEP}, 0
    s_mov_b32 s{S_SPIN}, 0
    s_mov_b32 s{S_BSL}, 0
    s_mul_i32 s{S_KV}, s{S_H}, 8192
    s_add_u32 s{S_KV}, s{S_KV}, {KX + w*2048}
    s_add_u32 s{S_KV2}, s{S_KV}, {VX - KX}
    s_add_u32 s{S_PUB}, s{S_KV}, {KVM - KX}
    s_mul_i32 s{S_BA}, s{S_H}, 9216
    s_add_u32 s{S_BA}, s{S_BA}, {MBA}
    s_lshl_b32 s{S_T1}, s{S_H}, 7
    s_add_u32 s{S_BR}, s{S_T1}, {MBA + w*4096}
    s_add_u32 s{S_RHO}, s{S_T1}, {MBB + w*4096}
    s_mov_b32 s{S_ASL}, {MBA_SLOT}
    s_movk_i32 s{S_9216}, 9216
    """)
    if w == 2:
        a(f"s_cmp_ge_u32 s{S_H}, 8\ns_cselect_b32 s{S_T0}, 0x80000000, 0\ns_or_b32 s{S_RHO}, s{S_RHO}, s{S_T0}")
    a(f"s_add_u32 s{S_BCL}, s{S_RHO}, {3*MBB_SLOT}\ns_add_u32 s{S_BC2}, s{S_RHO}, {2*MBB_SLOT}")
    a(f"s_add_u32 s{S_HST}, s{S_RHO}, {HIST - MBB}")

def loop(a, w, P, sc, Lend):
    tag = f"c{w}{'s' if sc else 'f'}"
    WM.lds = WM.ldsw[w]
    psc = P.get("psc", "sc1")
    Ltop, Lfirst, Lout = f"L{tag}_top", f"L{tag}_first", f"L{tag}_out"
    BP, TMP = V0, V0 + 1
    sq_, vq_ = [], []
    def gap(*items):
        n0 = len(a.lines)
        for it in items:
            if it is None: continue
            it() if callable(it) else a(it)
        new = a.lines[n0:]
        room = (2 if any(x.startswith(("ds_", "buffer_store")) for x in new) else 3) - len(new)
        nv = 1 if (vq_ and room > 0) else 0
        while room - nv > 0 and sq_ and (len(a.lines) - n0) < 2 + (0 if nv else 1):
            a(sq_.pop(0)); room -= 1
        if nv: a(vq_.pop(0))
    def sm(d, A, B, *items):
        smf(a, d, A, B); gap(*items)
    def spin(k=0):
        if P.get("cnt"): a(f"s_add_u32 s{83+k}, s{83+k}, 1")
        a(f"s_add_u32 s{S_SPIN}, s{S_SPIN}, 1\ns_cmp_gt_u32 s{S_SPIN}, 400000\ns_cbranch_scc1 {Lend}")
    def rdW(unit, half, dst, q, tg):
        if unit[0] in P.get("xw", ""): return None
        return lambda: a.ds(f"ds_read_b128 {v(dst+4*q,4)}, v{AW} offset:{WM.lds[(unit,half)] + q*1024}", tg)
    def rdA(p, q): return lambda: a.ds(f"ds_read_b128 {v(q,4)}, v{MEMA} offset:{chunk_of(w,p)*1024}", f"A{p}")
    def wl(*t): return lambda: a.wl(*t)
    def vm(txt, tg): return lambda: a.vm(txt, tg)
    Q = lambda p, h: WM.reg(("Q", p), h)
    K = lambda p, h: WM.reg(("K", p), h)
    Vw = lambda p, h: WM.reg(("V", p), h)
    NEG = V0 + 2
    RL, RS = V1 + 2, V1 + 3
    FILL = f"v_mov_b32 v{L16}, v{L16}"
    def warm(n):
        for _ in range(n): a(FILL + "\ns_nop 2")
    def chk(q, q2=None):
        a(f"v_max3_u32 v{TMP}, v{q}, v{q+1}, v{q+2}")
        if q2 is not None: a(f"v_max3_u32 v{TMP}, v{TMP}, v{q2}, v{q2+1}\nv_max3_u32 v{TMP}, v{TMP}, v{q2+2}, v{q2+3}")
        a(f"v_max_u32 v{TMP}, v{TMP}, v{q+3}\nv_cmp_eq_u32 vcc, -1, v{TMP}")
    def bld(q, i): a(f"buffer_load_dwordx4 {v(q,4)}, v{BP}, s[8:11], s{S_BP+i} offen sc1")
    rdy_ld = f"buffer_load_dword v{PFD}, off, s[72:75], s{S_RDY} sc1"
    rdy_v = [f"v_subrev_u32 v{V1}, 64, v{PFD}", f"v_ashrrev_i32 v{V1}, 31, v{V1}"]
    chk_rdy = (w == 3 and P.get("full"))
    C8 = LST - LMEM
    n8 = 1
    def lofs(p): return C8 if chunk_of(w, p) == 8 else chunk_of(w, p) * 1024
    def rdA(p, q): return lambda: a.ds(f"ds_read_b128 {v(q,4)}, v{MEMA} offset:{lofs(p)}", f"A{p}")
    a(f"v_mov_b32 v{BP}, v38\nv_mov_b32 v{RS}, v37\nv_mov_b32 v{V1+1}, 0x80000000\nv_mov_b32 v{V1}, 0\nv_mov_b32 v{PFD}, 64")
    a(f"s_mov_b64 s[72:73], s[{S_DBG}:{S_DBG+1}]\ns_movk_i32 s74, 256\ns_mov_b32 s75, 0x20000\ns_movk_i32 s{S_RDY}, {D_KV*4}")
    a(f"s_add_u32 s{S_PF}, s{S_KV}, {(1 + P.get('pfd', 0))*32*8192}")
    for i, c in enumerate((chunk_of(w, 0), 8, chunk_of(w, 5))): a(f"s_mov_b32 s{S_BP+i}, {MBB + c*1024}")
    a(f"v_and_b32 v{R1}, 0x1f0, v{L16}\nv_lshlrev_b32 v{R1}, 2, v{R1}\nv_lshrrev_b32 v{R1+1}, 9, v{L16}\nv_lshl_or_b32 v{R1}, v{R1+1}, 24, v{R1}")
    a(f"buffer_load_dword v{R1}, v{R1}, s[8:11], s{S_KV} offen sc1")
    for q in (QA, QB, VA, VB): zero(a, q)
    a.wl0()
    a(".filler " + FILL)
    Lb, Lgo = f"L{tag}_pb", f"L{tag}_go"
    def chkm(q, m):
        a(f"v_max3_u32 v{TMP}, v{q}, v{q+1}, v{q+2}\nv_max_u32 v{TMP}, v{TMP}, v{q+3}\nv_cmp_eq_u32 s[{m}:{m+1}], -1, v{TMP}")
    def masked(m, txt): a(f"s_or_b64 exec, s[{m}:{m+1}], 1\n{txt}")
    def btx(q, i): return f"buffer_load_dwordx4 {v(q,4)}, v{BP}, s[8:11], s{S_BP+i} offen sc1"
    a.label(Ltop)
    if w < 2: warm(P.get("d2e" if w == 0 else "d2", 0))
    stamp(a, P, 8)
    bld(R0, 0)
    loadW(a, ("K", 0), 1, W0, "w0"); loadW(a, ("K", 1), 1, W1, "w1")
    zero(a, KA); zero(a, KB)
    if w < 3:
        a(f"v_mov_b32 v{NEG}, -1\nbuffer_store_dword v{NEG}, v{RS}, s[8:11], s{S_BC2} offen {sc}")
    ND = P.get("nd", 2)
    for _ in range(ND - 1):
        warm(P.get("wb1", 4)); bld(R0, 0)
    warm(P.get("wb2", 5))
    a.label(Lb)
    a(f"s_waitcnt vmcnt({ND - 1})")
    a(f"v_max3_u32 v{TMP}, v{R0}, v{R0+1}, v{R0+2}\nv_max_u32 v{TMP}, v{TMP}, v{R0+3}\nv_cmp_eq_u32 vcc, -1, v{TMP}")
    for _ in range(5): a(FILL)
    a(f"s_cbranch_vccnz {Lb}2")
    a.label(Lgo)
    a.vq = []; a.lq = ["w0", "w0", "w1", "w1"]
    stamp(a, P, 0)
    sq_ += [f"s_mov_b32 s{S_BC2}, s{S_BCL}"]
    sq_ += [f"s_xor_b32 s{S_ASL}, s{S_ASL}, {MBA_SLOT}", f"s_bfe_i32 s{S_TAG}, s{S_STEP}, 0x10001"]
    sq_ += [f"s_add_u32 s{S_BCL}, s{S_RHO}, s{S_BSL}", f"s_add_u32 s{S_BSL}, s{S_BSL}, {MBB_SLOT}",
            f"s_and_b32 s{S_BSL}, s{S_BSL}, {4*MBB_SLOT-1}", f"s_movk_i32 s{S_T2}, 1040", f"s_add_u32 s{S_RST}, s{S_RHO}, s{S_BSL}",
            f"s_add_u32 s{S_BP}, s{S_BSL}, {MBB + chunk_of(w, 0)*1024}"]
    sq_ += [f"s_add_u32 s{S_AST1}, s{S_BA}, s{S_ASL}", f"s_add_u32 s{S_AST}, s{S_AST1}, {2*w*256}", f"s_add_u32 s{S_AST2}, s{S_AST1}, {2*w*256 + 4096}",
            f"s_add_u32 s{S_AST1}, s{S_AST1}, {(32+w)*256}"]
    if w < 3:
        sq_ += [f"s_add_u32 s{S_RLD}, s{S_BR}, s{S_ASL}"] + [f"s_add_u32 s{S_RLD+i}, s{S_RLD}, {i*8*9216}" for i in (1, 2, 3)]
    def kw(p, q): return rdW(("K", p), 1, (W0, W1)[p & 1], q, ("w0", "w1")[p & 1])
    L8 = V1 + 2 - 0
    sm(QA, R0, Q(0, 0), lambda: a.ds(f"ds_write_b128 v{MEMA}, {v(R0,4)} offset:{lofs(0)}", "mw"))
    sm(QB, R0, Q(0, 1), vm(btx(R2, 2), "late"), vm(btx(L8, 1), "late") if n8 else None)
    if chk_rdy: vq_ += rdy_v
    sm(KA, R0, K(0, 0), wl("w0", "w1")); sm(KB, R0, v(W0, 8))
    sm(VA, R0, Vw(0, 0)); smf(a, VB, R0, Vw(0, 1))
    a.wl("mw"); a("s_barrier")
    stamp(a, P, 1)
    rdA(1, R1)(); rdA(2, KX0)()
    a.vm(f"buffer_load_dwordx4 {v(V0+2,4)}, v{L16}, s[8:11], s{S_KV2} offen sc1", "vx")
    a.wl("A1")
    def qk(p, A, g0=(), g1=(), g2=(), g3=()):
        b, t = ((W0, "w0"), (W1, "w1"))[p & 1]
        sm(QA, A, Q(p, 0), *g0); sm(QB, A, Q(p, 1), *g1); sm(KA, A, K(p, 0), *g2, wl(t)); sm(KB, A, v(b, 8), *g3)
    Ll, Llok = f"L{tag}_lp", f"L{tag}_lok"
    late_v = [f"v_max3_u32 v{TMP}, v{R2}, v{R2+1}, v{R2+2}"]
    if n8: late_v += [f"v_max3_u32 v{TMP}, v{TMP}, v{L8}, v{L8+1}", f"v_max3_u32 v{TMP}, v{TMP}, v{L8+2}, v{L8+3}"]
    late_v += [f"v_max3_u32 v{TMP}, v{TMP}, v{R2+3}, v{V1}" if chk_rdy else f"v_max_u32 v{TMP}, v{TMP}, v{R2+3}", f"v_cmp_eq_u32 vcc, -1, v{TMP}"]
    def late_br():
        a(f"s_cbranch_vccnz {Ll}"); a.label(Llok)
    def late_wr(): a.ds(f"ds_write_b128 v{MEMA}, {v(R2,4)} offset:{lofs(5)}", "mw2")
    def late_wr8(): a.ds(f"ds_write_b128 v{MEMA}, {v(L8,4)} offset:{C8}", "mw2")
    kvstep = 0 if P.get("nokv") else 32 * 8192
    ldk0 = vm(f"buffer_load_dwordx4 {v(KX0,4)}, v{L16}, s[8:11], s{S_KV} offen sc1", "kx")
    ldk1 = vm(f"buffer_load_dwordx4 {v(KX1,4)}, v{L16}, s[8:11], s{S_KV} offen offset:1024 sc1", "kx")
    ldv0 = vm(f"buffer_load_dwordx4 {v(V0+2,4)}, v{L16}, s[8:11], s{S_KV2} offen sc1", "vx")
    ldv1 = vm(f"buffer_load_dwordx4 {v(V1+2,4)}, v{L16}, s[8:11], s{S_KV2} offen offset:1024 sc1", "vx")
    vq_ += [f"v_and_b32 v{PFD}, 0x1f0, v{L16}", f"v_lshlrev_b32 v{PFD}, 2, v{PFD}", f"v_lshrrev_b32 v{TMP}, 9, v{L16}",
            f"v_lshl_or_b32 v{PFD}, v{TMP}, 24, v{PFD}"]
    keepv = vq_[:]; vq_.clear()
    qk(1, R1, g0=(kw(2, 0),), g1=(kw(2, 1),), g2=(rdA(3, KX1),), g3=(kw(3, 0), wl("A2")))
    vq_ += keepv
    sm(VA, R1, Vw(1, 0), kw(3, 1)); a.wl("A2")
    lpos = P.get("lpos", 3)
    for k, (d, B) in enumerate(((QA, Q(2, 0)), (QB, Q(2, 1)), (KA, K(2, 0)), (KB, v(W0, 8)))):
        if k == lpos: vq_ += late_v
        sm(d, KX0, B, (lambda: a.wv("late")) if k == lpos else None, wl("w0", "A3") if k == 2 else None)
    stamp(a, P, 10)
    a.wl("A3")
    if lpos == 4: vq_ += late_v
    qk(3, KX1, g0=((lambda: a.wv("late")) if lpos == 4 else kw(4, 0),), g1=(kw(4, 1),), g2=(), g3=(kw(4, 0) if lpos == 4 else None,))
    while vq_: a(vq_.pop(0))
    smf(a, VB, R1, Vw(1, 1))
    late_br()
    stamp(a, P, 11)
    sm(QA, L8, Q(4, 0), late_wr); sm(QB, L8, Q(4, 1), ldk0); sm(KA, L8, K(4, 0), wl("w0"))
    sm(KB, L8, v(W0, 8), kw(5, 0)); sm(VA, L8, Vw(4, 0), kw(5, 1), ldk1); smf(a, VB, L8, Vw(4, 1)); ldv1()
    stamp(a, P, 20)
    a.wl("mw2")
    stamp(a, P, 21)
    a("s_barrier")
    stamp(a, P, 9)
    sq_ += [f"s_add_u32 s{S_KV}, s{S_KV}, {kvstep}", f"s_add_u32 s{S_BP+2}, s{S_BSL}, {MBB + chunk_of(w, 5)*1024}",
            f"s_add_u32 s{S_BP+1}, s{S_BSL}, {MBB + 8*1024}"]
    SRA, SRA3 = BP, TMP
    vq_ += [f"v_and_b32 v{SRA}, 0x70, v{L16}", f"v_lshlrev_b32 v{SRA}, 1, v{SRA}", f"v_lshrrev_b32 v{SRA3}, 8, v{L16}",
            f"v_mad_u32_u24 v{SRA3}, v{SRA3}, s{S_T2}, v{SRA}", f"v_add_u32 v{SRA3}, {LSX}, v{SRA3}",
            f"v_and_b32 v{SRA}, 0x80, v{L16}", f"v_lshl_add_u32 v{SRA}, v{SRA}, 1, v{SRA3}"]
    pf = vm(f"buffer_load_dword v{PFD}, v{PFD}, s[8:11], s{S_PF} offen sc1", "pf") if not P.get("nopf") else None
    rdA(6, R1)()
    sm(VA, R2, Vw(5, 0), pf); sm(VB, R2, Vw(5, 1), rdA(8, R0))
    sq_ += [f"s_add_u32 s{S_KV2}, s{S_KV2}, {kvstep}", f"s_add_u32 s{S_PF}, s{S_PF}, {kvstep}"]
    qk(5, R2, g0=(kw(6, 0),), g1=(kw(6, 1),), g2=(), g3=(rdA(7, R2), wl("A6")))
    qk(6, R1, g0=(kw(7, 0),), g1=(kw(7, 1),), g3=(kw(8, 0), wl("A7")))
    hist = vm(f"buffer_store_dword v{V1}, v{V1+1}, s[8:11], s{S_HST} offen sc1", "pub") if (P.get("full") and w < 3 and not P.get("nohist")) else None
    qk(7, R2, g0=(kw(8, 1),), g1=(hist or (vm(rdy_ld, "pf") if chk_rdy else None),), g3=(rdW(("V", 7), 1, W1, 0, "w1"), wl("A8")))
    qk(8, R0, g0=(rdW(("V", 7), 1, W1, 1, "w1"),), g3=(rdW(("V", 8), 1, W0, 0, "w0"),))
    assert not sq_ and not vq_
    stamp(a, P, 2)
    def tm(d, A): a(f"v_mfma_f32_16x16x16_bf16 {v(d,4)}, {v(A,2)}, {v(TSEL,2)}, 0")
    def m32(d, A, B, C="0"): a(f"v_mfma_f32_16x16x32_bf16 {v(d,4)}, {v(A,4)}, {v(B,4)}, {C}")
    cvt(a, QA, QA, QA + 1); cvt(a, QA + 1, QA + 2, QA + 3); cvt(a, QA + 2, QB, QB + 1); cvt(a, QA + 3, QB + 2, QB + 3)
    cvt(a, KA, KA, KA + 1); cvt(a, KA + 1, KA + 2, KA + 3)
    tm(QB, QA)
    cvt(a, KA + 2, KB, KB + 1); cvt(a, KA + 3, KB + 2, KB + 3)
    tm(KB, QA + 2); (rdW(("V", 8), 1, W0, 1, "w0") or (lambda: 0))()
    a.wv("kx")
    tm(QA, KA)
    cvt(a, QB, QB, QB + 1); cvt(a, QB + 1, QB + 2, QB + 3)
    tm(R1, KA + 2)
    cvt(a, QB + 2, KB, KB + 1); cvt(a, QB + 3, KB + 2, KB + 3)
    m32(KB, KX0, QB); rdA(2, KX0)()
    cvt(a, QA, QA, QA + 1); cvt(a, QA + 1, QA + 2, QA + 3)
    m32(KA, KX1, QB); rdA(3, KX1)()
    cvt(a, QA + 2, R1, R1 + 1); cvt(a, QA + 3, R1 + 2, R1 + 3)
    m32(R1, QA, QB)
    if P.get("pub"):
        a.vm(f"buffer_store_dwordx4 {v(QA,4)}, v{L16}, s[8:11], s{S_PUB} offen {psc}", "pub")
    a.wl("w0", "w1")
    cvt(a, KB, KB, KB + 1); cvt(a, KB + 1, KB + 2, KB + 3); cvt(a, KA, KA, KA + 1); cvt(a, KA + 1, KA + 2, KA + 3)
    def sw(q, off): return lambda: a.ds(f"ds_write_b64 v{SWA}, {v(q,2)} offset:{off}", "sw")
    def stash(q, i, tg): return lambda: a.ds(f"ds_read_b128 {v(q,4)}, v{MEMA} offset:{LST - LMEM + i*1024}", tg)
    SLO, SHI = QA, QB
    U00 = ("O", (0, 0))
    sm(VA, R0, Vw(8, 0), sw(KB, 0), sw(KA, 256))
    cvt(a, R1, R1, R1 + 1); cvt(a, R1 + 1, R1 + 2, R1 + 3)
    sm(VB, R0, v(W0, 8), sw(R1, 512))
    sm(VB, R2, v(W1, 8), stash(SLO, 1, "sel"))
    sm(VA, R2, Vw(7, 0), rdA(6, R2), wl("A2", "A3"))
    sm(VA, KX1, Vw(3, 0), stash(SHI, 3, "sel"))
    smf(a, VB, KX1, Vw(3, 1))
    a.wl("sw")
    sq_ += ([f"s_add_u32 s{S_HST}, s{S_HST}, {HIST_STRIDE}"] if hist else [])
    if chk_rdy: sq_ += [f"s_add_u32 s{S_RDY}, s{S_STEP}, {3 + P.get('pfd', 0)}", f"s_lshr_b32 s{S_RDY}, s{S_RDY}, 3", f"s_min_u32 s{S_RDY}, s{S_RDY}, 7",
                        f"s_lshl_b32 s{S_RDY}, s{S_RDY}, 2", f"s_add_u32 s{S_RDY}, s{S_RDY}, {D_KV*4}"]
    a("s_barrier")
    stamp(a, P, 3)
    B1, B2, B3, X, M, ON = KX1, KB, KA, KX0, R1, KA
    Bq = VB
    E1, E2, F1, F2, ZD, AQ = QA, QB, VA, KX1, KB, R2
    SQ = V1 + 2
    a.ds(f"ds_read_b128 {v(B1,4)}, v{SRA}", "b1")
    sm(VA, KX0, Vw(2, 0), lambda: a.ds(f"ds_read_b128 {v(B2,4)}, v{SRA} offset:16", "b2"))
    sm(VB, KX0, Vw(2, 1), lambda: a.ds(f"ds_read_b128 {v(B3,4)}, v{SRA3} offset:512", "b3"), wl("A6"))
    vq_ += [f"v_mov_b64 {v(R0,2)}, 0"]
    sm(VA, R2, Vw(6, 0), rdW(U00, 0, W0, 0, "w0"))
    sm(VB, R2, Vw(6, 1), rdW(U00, 0, W0, 1, "w0"), wl("b1", "b2"))
    stamp(a, P, 15)
    m32(X, SLO, B1)
    (rdW(U00, 1, W1, 0, "w1") or (lambda: 0))()
    m32(X, SHI, B2, v(X, 4))
    a.wl("b3")
    cvt(a, V0, VA, VA + 1)
    m32(M, SLO, B3)
    cvt(a, V0 + 1, VA + 2, VA + 3); cvt(a, V1, VB, VB + 1)
    m32(M, SHI, B3, v(M, 4))
    (rdW(U00, 1, W1, 1, "w1") or (lambda: 0))()
    stamp(a, P, 12)
    for r in range(4): a(f"v_exp_f32 v{KX1+r}, v{X+r}")
    cvt(a, V1 + 1, VB + 2, VB + 3)
    cvt(a, Bq + 2, KX1, KX1 + 1); cvt(a, Bq + 3, KX1 + 2, KX1 + 3)
    a(f"v_exp_f32 v{KB}, v{M}")
    a.wv("vx")
    m32(E2, V0 + 4, Bq + 2)
    stash(AQ, 2, "aq")()
    a(f"v_exp_f32 v{KB+1}, v{M+1}")
    m32(F2, V1 + 4, Bq + 2)
    if P.get("pub"): a(f"s_cmp_eq_u32 s{S_STEP}, 63")
    for r in range(2, 4): a(f"v_exp_f32 v{KB+r}, v{M+r}")
    cvt(a, Bq, KB, KB + 1); cvt(a, Bq + 1, KB + 2, KB + 3)
    a(f"v_mov_b64 {v(ON,2)}, s[{S_ONE}:{S_ONE+1}]\nv_mov_b64 {v(ON+2,2)}, s[{S_ONE+2}:{S_ONE+3}]")
    stamp(a, P, 13)
    m32(E1, V0, Bq)
    if P.get("pub"): a.vm(f"buffer_store_dwordx2 {v(V0,2)}, v{L16}, s[8:11], s{S_PUB} offen offset:1024 {psc}", "pub")
    m32(ZD, ON, Bq)
    if P.get("pub"): a.vm(f"buffer_store_dwordx2 {v(V1,2)}, v{L16}, s[8:11], s{S_PUB} offen offset:1032 {psc}", "pub")
    if P.get("pub"): a(f"s_cbranch_scc1 {Lout}")
    m32(F1, V1, Bq)
    a.wl("aq")
    Lslow, Lcont = f"L{tag}_slow", f"L{tag}_cont"
    def finish():
        for r in range(4): a(f"v_add_f32_dpp v{E1+r}, v{E2+r}, v{E1+r} row_ror:8 row_mask:0xf bank_mask:0x3")
        a(f"v_add_f32_dpp v{ZD}, v{ZD}, v{ZD} row_ror:8 row_mask:0xf bank_mask:0xf")
        a(f"v_rcp_f32 v{ZD+2}, v{ZD}")
        a(f"v_cmp_nlt_f32 vcc, s{S_ZLO}, v{ZD}")
        a(f"v_cmp_ngt_f32 s[{S_T0}:{S_T0+1}], s{S_ZHI}, v{ZD}")
        for r in range(4): a(f"v_add_f32_dpp v{E1+r}, v{F1+r}, v{F2+r} row_ror:8 row_mask:0xf bank_mask:0xc")
        a(f"v_pk_mul_f32 {v(E1,2)}, {v(E1,2)}, {v(ZD+2,2)} op_sel_hi:[1,0]")
        a(f"v_pk_mul_f32 {v(E1+2,2)}, {v(E1+2,2)}, {v(ZD+2,2)} op_sel_hi:[1,0]")
        cvt(a, E1, E1, E1 + 1); cvt(a, E1 + 1, E1 + 2, E1 + 3)
        a.ds(f"ds_write_b64 v{AQ}, {v(E1,2)} offset:{w*512}", "ow")
    finish()
    stamp(a, P, 14)
    DS_, D = KB, [R1, KA, KX0, KX1]
    for q in (DS_, D[3], D[1]): zero(a, q)
    a(f"s_or_b64 vcc, vcc, s[{S_T0}:{S_T0+1}]")
    a(f"s_cbranch_scc1 {Lslow}")
    a.label(Lcont)
    zero(a, D[0]); zero(a, D[2])
    BPs, AAST1, AAST = SQ + 2, SQ + 3, AQ + 3
    stamp(a, P, 18)
    a.wl("ow")
    stamp(a, P, 19)
    a("s_barrier")
    stamp(a, P, 4)
    AS = [V0, V0 + 4]; AD = [QA, QB, VA, VB]
    for k in range(4): a.ds(f"ds_read_b128 {v(AD[k],4)}, v{AQ+1} offset:{k*512}", f"ad{k}")
    BPs, AAST1, AAST = SQ + 2, SQ + 3, AQ + 3
    RSEL, RD = W1, W0
    loadW(a, ("O", (0, 1)), 1, V0, "w2")
    if P.get("pub"): a(f"s_add_u32 s{S_PUB}, s{S_PUB}, {32*8192}")
    warm(P.get("wo2", 0))
    def ow(p, k):
        unit = ("O", (p, k >> 1)); half = k & 1
        if (p, k) == (0, 3): return v(V0, 8)
        return v((W0, W1)[half], 8) if unit in FULL_RES else WM.reg(unit, half)
    def o(p, k, *items): sm(D[p], AD[k], ow(p, k), *items)
    def st2(p, force=False):
        if P.get("xst") and not force and p < 3: return None
        so = S_AST if p < 2 else S_AST2
        return f"buffer_store_dwordx2 {v(D[p],2)}, v{AAST}, s[8:11], s{so} offen offset:{(p&1)*2048} {sc}"
    def c2(p): return [] if P.get("xcv") and p < 3 else [f"v_cvt_pk_bf16_f32 v{D[p]}, v{D[p]}, v{D[p]+1}", f"v_cvt_pk_bf16_f32 v{D[p]+1}, v{D[p]+2}, v{D[p]+3}",
                       f"v_bfi_b32 v{D[p]}, 1, s{S_TAG}, v{D[p]}"]
    def ras(u): return lambda: a.ds(f"ds_read_b128 {v(AS[u],4)}, v{AQ+2} offset:{u*1024}", "as")
    U11, U21, U31 = ("O", (1, 1)), ("O", (2, 1)), ("O", (3, 1))
    a.wl("ad0")
    stamp(a, P, 16)
    US = ("S", 0)
    o(0, 0, rdW(U11, 0, W0, 0, "w0"), wl("ad1"))
    o(0, 1, rdW(U11, 0, W0, 1, "w0"), wl("ad2"))
    o(0, 2, rdW(U11, 1, W1, 0, "w1"), wl("ad3", "w2"))
    o(0, 3, rdW(U11, 1, W1, 1, "w1"), ras(0))
    stamp(a, P, 22)
    vq_ += [f"v_lshrrev_b32 v{BPs}, 9, v{L16}"]
    o(1, 0, ras(1))
    vq_ += c2(0)
    o(1, 1, wl("w0"))
    o(1, 2, wl("w1"))
    o(1, 3, rdW(US, 0, W0, 0, "w0"))
    stamp(a, P, 23)
    o(2, 0, st2(0))
    vq_ += c2(1)
    o(2, 1, rdW(US, 0, W0, 1, "w0"))
    o(2, 2, rdW(US, 1, W1, 0, "w1"))
    o(2, 3, rdW(US, 1, W1, 1, "w1"))
    stamp(a, P, 24)
    o(3, 0, st2(1))
    vq_ += c2(2)
    o(3, 1, wl("as", "w0"))
    sm(DS_, AS[0], v(W0, 8), wl("w1"))
    sm(DS_, AS[1], v(W1, 8), stash(RSEL, 1, "rs") if w < 3 else None)
    o(3, 2, st2(2))
    vq_ += [f"v_permlane32_swap_b32 v{DS_}, v{DS_+2}"]
    o(3, 3)
    stamp(a, P, 17)
    if P.get("xst"):
        for p_ in range(3): a(st2(p_, True))
    a(f"""
    v_permlane32_swap_b32 v{DS_+1}, v{DS_+3}
    v_add_f32 v{DS_}, v{DS_}, v{DS_+2}
    v_add_f32 v{DS_+1}, v{DS_+1}, v{DS_+3}
    v_cvt_pk_bf16_f32 v{DS_}, v{DS_}, v{DS_+1}
    v_and_b32 v{AAST1}, 0xff, v{AAST}
    v_bfi_b32 v{DS_}, 1, s{S_TAG}, v{DS_}
    v_lshl_or_b32 v{AAST1}, v{BPs}, 2, v{AAST1}
    """)
    assert not vq_ and not sq_
    LD = [R0, R1, KX0, KX1]
    early = (w == 0)
    Lnr = f"L{tag}_nored"
    def addr_rest():
        a(f"""
        v_lshl_or_b32 v{RS}, v{BPs}, 2, v{RS}
        v_bfe_u32 v{TMP}, v{L16}, 8, 1
        v_lshl_or_b32 v{RS}, v{TMP}, 3, v{RS}
        v_bfe_u32 v{TMP}, v{L16}, 7, 1
        v_lshl_or_b32 v{RS}, v{TMP}, 31, v{RS}
        v_and_b32 v{BP}, 0x33f, v{L16}
        v_lshl_or_b32 v{BP}, v{TMP}, 6, v{BP}
        v_bfe_u32 v{TMP}, v{L16}, 6, 1
        v_lshl_or_b32 v{BP}, v{TMP}, 7, v{BP}
        """)
    for x in c2(3): a(x)
    a(st2(3))
    a(f"buffer_store_dword v{DS_}, v{AAST1}, s[8:11], s{S_AST1} offen {sc}")
    stamp(a, P, 5)
    def rtx(i): return f"buffer_load_dwordx4 {v(LD[i],4)}, v{RL}, s[8:11], s{S_RLD+i} offen sc1"
    CK = V0 + 4
    def tagchk(i):
        q = LD[i]
        if w == 2:
            a(f"v_bitop3_b32 v{CK+i}, v{q}, v{q+1}, s{S_TAG} bitop3:0x81\nv_bitop3_b32 v{TMP}, v{q+2}, v{q+3}, s{S_TAG} bitop3:0x81\nv_and_b32 v{CK+i}, v{CK+i}, v{TMP}")
        else:
            a(f"v_bitop3_b32 v{CK+i}, v{q}, v{q+2}, s{S_TAG} bitop3:0x81")
    def tagmask(i): a(f"v_and_b32 v{TMP}, 1, v{CK+i}\nv_cmp_eq_u32 s[{S_MK+2*i}:{S_MK+2*i+1}], 0, v{TMP}")
    def tagall(): a(f"v_bitop3_b32 v{TMP}, v{CK}, v{CK+1}, v{CK+2} bitop3:0x80\nv_bitop3_b32 v{TMP}, v{TMP}, v{CK+3}, 1 bitop3:0x80\nv_cmp_eq_u32 vcc, 0, v{TMP}")
    def rre():
        for i in range(4): masked(S_MK + 2 * i, rtx(i))
        a("s_mov_b64 exec, -1")
    tailz = [QA, QB, VA, VB]
    if w < 3:
        if w == 2: a(f"s_cmp_ge_u32 s{S_H}, 8\ns_cbranch_scc1 {Lnr}")
        a(f"v_lshrrev_b32 v{RL}, 7, v{L16}\nv_and_b32 v{RS}, 0x70, v{L16}\nv_mad_u32_u24 v{RL}, v{RL}, s{S_9216}, v{RS}")
        warm(P.get("d1e" if early else "d1", 0))
        for i in range(4): a(rtx(i))
        for q in tailz: zero(a, q)
        addr_rest()
        warm(P.get("wa1", 7))
        a.wl("rs")
        for i in range(4):
            a(f"s_waitcnt vmcnt({3-i})")
            m32(RD, LD[i], RSEL, "0" if i == 0 else v(RD, 4))
            tagchk(i)
        def rfin():
            tagall()
            a(f"""
            v_permlane32_swap_b32 v{RD}, v{RD+2}
            v_permlane32_swap_b32 v{RD+1}, v{RD+3}
            v_pk_add_f32 {v(RD,2)}, {v(RD,2)}, {v(RD+2,2)}
            v_cvt_pk_bf16_f32 v{RD}, v{RD}, v{RD+1}
            """)
        rfin()
        a(f"s_cbranch_vccnz L{tag}_rf")
        a.label(f"L{tag}_rn")
        a(f"buffer_store_dword v{RD}, v{RS}, s[8:11], s{S_RST} offen {sc}")
        a(f"v_mov_b32 v{V1}, v{RD}\nv_mov_b32 v{V1+1}, v{RS}")
        stamp(a, P, 6)
        if w == 2:
            a(f"s_branch L{tag}_tail")
            a.label(Lnr)
    if w >= 2:
        for q in tailz: zero(a, q)
        addr_rest()
        nw = P.get("d3", 30)
        if w == 3 and P.get("series"):
            a(f"""
            s_memtime s[56:57]
            s_lshl_b32 s{S_T0}, s{S_STEP}, 1
            s_add_u32 s{S_T0}, s{S_T0}, {LSX + 3900}
            v_mov_b32 v{R2}, s{S_T0}
            s_waitcnt lgkmcnt(0)
            s_sub_u32 s{S_T0}, s56, s58
            s_mov_b32 s58, s56
            v_mov_b32 v{R2+1}, s{S_T0}
            ds_write_b16 v{R2}, v{R2+1}
            """)
            nw -= 12
        warm(nw)
        if w == 3: stamp(a, P, 6)
        a.label(f"L{tag}_tail")
    a.lq = []
    a(f"s_add_u32 s{S_STEP}, s{S_STEP}, 1")
    stamp(a, P, 7)
    if P.get("stamp"):
        a.wl0()
        if "only" in P and not P.get("noacc"):
            i, j = 0, 1
            a(f"s_sub_u32 s{S_T0}, s{S_TM+2*j}, s{S_TM+2*i}\ns_add_u32 s80, s80, s{S_T0}")
        for i in range(6 if "only" not in P else 0):
            a(f"s_sub_u32 s{S_T0}, s{S_TM+2*i+2}, s{S_TM+2*i}\ns_add_u32 s{80+i}, s{80+i}, s{S_T0}")
        Lns = f"L{tag}_ns"
        a(f"s_cmp_lg_u32 s{S_STEP}, 31\ns_cbranch_scc1 {Lns}")
        for i in range(8): a(f"s_mov_b32 s{92+i}, s{S_TM+2*i}")
        a.label(Lns)
    if P.get("pub"): a(f"s_branch {Ltop}")
    else: a(f"s_cmp_lt_u32 s{S_STEP}, 63\ns_cbranch_scc1 {Ltop}\ns_branch {Lout}")
    if w < 3:
        a.label(f"L{tag}_rf")
        for i in range(4): tagmask(i)
        rre()
        warm(P.get("wr1", 4))
        a.label(f"L{tag}_rg")
        rre(); spin(1)
        for i in range(4):
            a(f"s_waitcnt vmcnt({7-i})")
            tagchk(i)
            m32(RD, LD[i], RSEL, "0" if i == 0 else v(RD, 4))
            tagmask(i)
        rfin()
        a(f"s_cbranch_vccnz L{tag}_rg\ns_branch L{tag}_rn")
    a.label(Lb + "2")
    a(f"s_or_b64 exec, vcc, 1\n{btx(R0, 0)}\ns_mov_b64 exec, -1")
    spin()
    warm(P.get("wb3", 2))
    a(f"s_branch {Lb}")
    a.label(Ll)
    a(btx(R2, 2))
    if n8: a(btx(L8, 1))
    if chk_rdy: a(rdy_ld.replace(f"v{PFD}", f"v{V1}"))
    spin(2)
    a("s_waitcnt vmcnt(0)")
    if chk_rdy:
        for x in rdy_v: a(x.replace(f"v{PFD}", f"v{V1}"))
    for x in late_v: a(x)
    a(f"s_cbranch_vccnz {Ll}\ns_branch {Llok}")
    a.label(Lslow)
    t0, t1 = E1, E1 + 1
    a(f"""
    v_max3_f32 v{t0}, v{X}, v{X+1}, v{X+2}
    v_max3_f32 v{t1}, v{X+3}, v{M}, v{M+1}
    v_max3_f32 v{t0}, v{t0}, v{M+2}, v{M+3}
    v_max_f32 v{t0}, v{t0}, v{t1}
    v_max_f32_dpp v{t0}, v{t0}, v{t0} row_ror:8 row_mask:0xf bank_mask:0xf
    v_mov_b32 v{t1}, v{t0}
    v_permlane16_swap_b32 v{t0}, v{t1}
    v_max_f32 v{t0}, v{t0}, v{t1}
    v_mov_b32 v{t1}, v{t0}
    v_permlane32_swap_b32 v{t0}, v{t1}
    v_max_f32 v{t0}, v{t0}, v{t1}
    """)
    for q in (X, M):
        for r in range(4): a(f"v_sub_f32 v{q+r}, v{q+r}, v{t0}\nv_exp_f32 v{q+r}, v{q+r}")
    cvt(a, Bq, M, M + 1); cvt(a, Bq + 1, M + 2, M + 3); cvt(a, Bq + 2, X, X + 1); cvt(a, Bq + 3, X + 2, X + 3)
    a(f"v_mov_b64 {v(QA,2)}, 0")
    a(f"v_mov_b64 {v(ON,2)}, s[{S_ONE}:{S_ONE+1}]\nv_mov_b64 {v(ON+2,2)}, s[{S_ONE+2}:{S_ONE+3}]")
    m32(E2, V0 + 4, Bq + 2); m32(F2, V1 + 4, Bq + 2)
    m32(E1, V0, Bq); m32(ZD, ON, Bq); m32(F1, V1, Bq)
    finish()
    for q in (DS_, D[3], D[1]): zero(a, q)
    a(f"s_branch {Lcont}")
    a(".filler")
    a.label(Lout)
    a.vq = []; a.lq = []
    if w == 3 and P.get("series"):
        a(f"""
        v_lshrrev_b32 v{R2}, 3, v{L16}
        v_add_u32 v{R2+1}, {LSX + 3900}, v{R2}
        ds_read_u16 v{R2+2}, v{R2+1}
        s_lshl_b32 s{S_T0}, s{S_H}, 8
        s_add_u32 s{S_T0}, s{S_T0}, {102*MB}
        v_lshrrev_b32 v{R2}, 2, v{L16}
        s_waitcnt lgkmcnt(0)
        buffer_store_dword v{R2+2}, v{R2}, s[8:11], s{S_T0} offen
        """)
    if P.get("full"):
        if w < 3:
            a(f"buffer_store_dword v{V1}, v{V1+1}, s[8:11], s{S_HST} offen sc1")
        a("s_waitcnt vmcnt(0)")
    else:
        a("s_waitcnt vmcnt(0) lgkmcnt(0)\ns_barrier")
```

```python
from asmlib import *
from layout import *
import math, struct
def fbits(x): return struct.unpack("<I", struct.pack("<f", x))[0]

S_W = 21
G_RB, G_CB, G_MAT = 30, 31, 32
G_XS, G_WS = 36, 40
G_T0, G_T1, G_IT, G_XO, G_WO, G_OUT = 44, 45, 46, 47, 48, 49
G_C = 50
G_XL = 52
L16 = 0
XD, WD, XR, WR, OA = 1, 2, 4, 6, 8
FX, FW = 16, 48
STG = 65536

def tile(a, tag, tl=None, pre_epi=None, thr=0, JN=4):
    LG = 0 if JN == 4 else 1
    STG = 65536 if JN == 4 else 49152
    WB = 32768 >> LG
    T = 10
    a(f"""
    s_load_dwordx2 s[{G_XS}:{G_XS+1}], s[0:1], 40
    s_cmp_eq_u32 s{G_MAT}, 0
    s_cselect_b32 s{G_T0}, 64, 72
    s_cmp_eq_u32 s{G_MAT}, 2
    s_cselect_b32 s{G_T0}, 56, s{G_T0}
    s_load_dwordx2 s[{G_WS}:{G_WS+1}], s[0:1], s{G_T0}
    v_lshrrev_b32 v{T}, 4, v{L16}
    v_lshrrev_b32 v{T+1}, 3, v{T}
    v_and_b32 v{T+2}, 7, v{T}
    v_xor_b32 v{T+2}, v{T+2}, v{T+1}
    v_lshlrev_b32 v{T+2}, 4, v{T+2}
    s_movk_i32 s{G_T1}, 1152
    v_mad_u32_u24 v{XD}, v{T+1}, s{G_T1}, v{T+2}
    v_lshrrev_b32 v{T+1}, 5, v{T}
    v_and_b32 v{T+2}, 31, v{T}
    v_lshlrev_b32 v{T+3}, 2, v{T+1}
    v_xor_b32 v{T+2}, v{T+2}, v{T+3}
    v_lshlrev_b32 v{T+2}, 4, v{T+2}
    v_lshl_add_u32 v{WD}, v{T+1}, 13, v{T+2}
    v_xor_b32 v{WD+1}, 128, v{WD}
    s_lshr_b32 s{G_T0}, s{S_W}, 1
    s_lshl_b32 s{G_T0}, s{G_T0}, {14 - LG}
    v_and_b32 v{T+1}, 31, v{T}
    v_lshrrev_b32 v{T+2}, 5, v{T}
    v_and_b32 v{T+3}, 7, v{T}
    v_xor_b32 v{T+3}, v{T+3}, v{T+2}
    v_lshlrev_b32 v{T+3}, 4, v{T+3}
    v_lshl_add_u32 v{XR}, v{T+1}, 7, v{T+3}
    v_add_u32 v{XR}, s{G_T0}, v{XR}
    v_bfe_u32 v{T+1}, v{T}, 2, 2
    v_lshl_add_u32 v{T+3}, v{T+2}, 3, v{T+1}
    v_lshlrev_b32 v{T+3}, 9, v{T+3}
    v_bfe_u32 v{T+4}, v{T}, 4, 1
    v_and_b32 v{T+5}, 3, v{T}
    v_lshlrev_b32 v{T+5}, 3, v{T+5}
    v_lshl_or_b32 v{T+5}, v{T+4}, 5, v{T+5}
    v_lshl_or_b32 v{T+5}, v{T+1}, 6, v{T+5}
    v_add_u32 v{WR}, v{T+3}, v{T+5}
    s_and_b32 s{G_T0}, s{S_W}, 1
    s_lshl_b32 s{G_T0}, s{G_T0}, 8
    s_add_u32 s{G_T0}, s{G_T0}, {WB}
    v_add_u32 v{WR}, s{G_T0}, v{WR}
    s_waitcnt lgkmcnt(0)
    s_mov_b32 s{G_XS+2}, 2359296
    s_mov_b32 s{G_XS+3}, 0x20000
    s_mov_b32 s{G_WS+2}, 4718592
    s_mov_b32 s{G_WS+3}, 0x20000
    s_lshl_b32 s{G_XO}, s{G_RB}, {8 - LG}
    s_lshl_b32 s{G_T0}, s{S_W}, {6 - LG}
    s_add_u32 s{G_XO}, s{G_XO}, s{G_T0}
    s_mul_i32 s{G_XO}, s{G_XO}, 1152
    s_lshl_b32 s{G_WO}, s{S_W}, 17
    s_lshl_b32 s{G_T0}, s{G_CB}, 9
    s_add_u32 s{G_WO}, s{G_WO}, s{G_T0}
    s_lshl_b32 s{G_OUT}, s{S_W}, 13
    s_lshl_b32 s{G_XL}, s{S_W}, {13 - LG}
    """)
    XRk = [XR, XR + 1, 12, 13]; WRb = [WR, WR + 1, 14, 15]
    for kk in range(1, 4): a(f"v_xor_b32 v{XRk[kk]}, {kk*32}, v{XR}")
    for b in range(1, 4): a(f"v_xor_b32 v{WRb[b]}, {b*64}, v{WR}")
    def dma_items(st):
        it = []
        for i in range(8):
            if i < 2 * JN: it.append(f"s_add_u32 m0, s{G_XL}, {st*STG + i*1024}\ns_add_u32 s{G_T0}, s{G_XO}, {i*8*1152}\n"
                      f"buffer_load_dwordx4 v{XD}, s[{G_XS}:{G_XS+3}], s{G_T0} offen lds")
            it.append(f"s_add_u32 m0, s{G_OUT}, {st*STG + WB + i*1024}\ns_add_u32 s{G_T0}, s{G_WO}, {i*2*8192}\n"
                      f"buffer_load_dwordx4 v{WD + (i & 1)}, s[{G_WS}:{G_WS+3}], s{G_T0} offen lds")
        return it
    adv = f"s_add_u32 s{G_XO}, s{G_XO}, 128\ns_add_u32 s{G_WO}, s{G_WO}, {64*8192}"
    def read_items(kk, buf):
        it = []
        for i in range(4):
            if i < JN: it.append(f"ds_read_b128 {v(FX + 16*buf + 4*i, 4)}, v{XRk[kk]} offset:{i*4096}")
            for hf in range(2):
                it.append(f"ds_read_b64_tr_b16 {v(FW + 16*buf + 4*i + 2*hf, 2)}, v{WRb[i]} offset:{(kk*16 + 4*hf)*512}")
        return it
    def kstep(buf, swap, rd, dm):
        order = sorted([(i, j) for i in range(4) for j in range(JN)], key=lambda t: (max(t), t))
        for n, (i, j) in enumerate(order):
            acc = ag((i * 4 + j) * 16, 16)
            w_, x_ = v(FW + 16*buf + 4*i, 4), v(FX + 16*buf + 4*j, 4)
            A, B = (x_, w_) if swap else (w_, x_)
            a(f"v_mfma_f32_32x32x16_bf16 {acc}, {A}, {B}, {acc}")
            for _ in range(1 if JN == 4 else 2):
                if rd: a.ds(rd.pop(0), f"f{buf ^ 1}")
            if dm and (n % 2 == 1 or JN == 2): a(dm.pop(0))
    for st in range(1 if JN == 4 else 2):
        for x in dma_items(st): a(x)
        a(adv)
    for r in range(256):
        if (r >> 4) & 3 < JN: a(f"v_accvgpr_write_b32 a{r}, 0")
    if tl: a("s_waitcnt vmcnt(0)"); tl(5)
    a(f"s_cmp_eq_u32 s{G_MAT}, 1\ns_cbranch_scc1 L{tag}_v")
    def stage(st, swap, load, nxt, keep):
        a(f"s_waitcnt vmcnt({keep})\ns_barrier")
        a.lq = []
        for x in read_items(0, 0): a.ds(x, "f0")
        dm = dma_items(load) if load is not None else []
        for kk in range(4):
            a.wl(f"f{kk & 1}")
            kstep(kk & 1, swap, read_items(kk + 1, (kk + 1) & 1) if kk < 3 else None, dm)
        if load is not None: a(adv)
        if nxt is not None:
            for r in XRk + WRb: a(f"v_add_u32 v{r}, {((nxt - st) * STG) & 0xffffffff}, v{r}")
    for swap in (0, 1):
        t2 = f"{tag}{'v' if swap else 'k'}"
        if swap: a.label(f"L{tag}_v")
        a(f"s_mov_b32 s{G_IT}, 0")
        a.label(f"L{t2}_loop")
        if JN == 4:
            stage(0, swap, 1, 1, 0); stage(1, swap, 0, 0, 0)
            a(f"s_add_u32 s{G_IT}, s{G_IT}, 1\ns_cmp_lt_u32 s{G_IT}, 4\ns_cbranch_scc1 L{t2}_loop")
            stage(0, swap, None, None, 0)
        else:
            for st in range(3): stage(st, swap, (st + 2) % 3, (st + 1) % 3, 12)
            a(f"s_add_u32 s{G_IT}, s{G_IT}, 1\ns_cmp_lt_u32 s{G_IT}, 2\ns_cbranch_scc1 L{t2}_loop")
            stage(0, swap, 2, 1, 12); stage(1, swap, None, 2, 12); stage(2, swap, None, None, 0)
        if pre_epi: pre_epi(t2)
        if tl: tl(6)
        T = 10
        a(f"v_lshrrev_b32 v{T}, 4, v{L16}\nv_lshrrev_b32 v{T+1}, 5, v{T}\nv_lshlrev_b32 v{T+1}, 8, v{T+1}")
        if swap:
            a(f"v_bfe_u32 v{T+2}, v{T}, 4, 1\nv_lshl_or_b32 v{T+1}, v{T+2}, 10, v{T+1}\nv_and_b32 v{T+2}, 0xf0, v{L16}\nv_or_b32 v{OA}, v{T+1}, v{T+2}")
        else:
            a(f"""
            v_bfe_u32 v{T+2}, v{T}, 3, 1
            v_lshl_or_b32 v{T+1}, v{T+2}, 10, v{T+1}
            v_bfe_u32 v{T+2}, v{T}, 4, 1
            v_lshl_or_b32 v{T+1}, v{T+2}, 7, v{T+1}
            v_and_b32 v{T+2}, 0x70, v{L16}
            v_or_b32 v{OA}, v{T+1}, v{T+2}
            """)
        cb = fbits((128 ** -0.5) * math.log2(math.e))
        a(f"""
        s_lshl_b32 s{G_T0}, s{G_RB}, {3 - LG}
        s_lshr_b32 s{G_T1}, s{S_W}, 1
        s_lshl_b32 s{G_T1}, s{G_T1}, {2 - LG}
        s_add_u32 s{G_T0}, s{G_T0}, s{G_T1}
        s_lshl_b32 s{G_OUT}, s{G_T0}, 18
        s_lshl_b32 s{G_T0}, s{G_CB}, 1
        s_and_b32 s{G_T1}, s{S_W}, 1
        s_add_u32 s{G_T0}, s{G_T0}, s{G_T1}
        s_lshl_b32 s{G_T0}, s{G_T0}, 13
        s_add_u32 s{G_OUT}, s{G_OUT}, s{G_T0}
        s_lshl_b32 s{G_T0}, s{G_MAT}, 24
        s_add_u32 s{G_OUT}, s{G_OUT}, s{G_T0}
        s_cmp_eq_u32 s{G_MAT}, 2
        s_cselect_b32 s{G_C}, {cb}, 1.0
        s_mov_b32 s{G_C+1}, s{G_C}
        s_nop 7
        s_nop 7
        """)
        n = 0
        for j in range(JN):
            for i in range(4):
                a(f"s_add_u32 s{G_T0}, s{G_OUT}, {j*262144 + i*2048}")
                for jj in range(2):
                    r0 = 16 + 12 * (n % 4); n += 1
                    for e in range(8): a(f"v_accvgpr_read_b32 v{r0+e}, a{(i*4+j)*16 + 8*jj + e}")
                    if not swap:
                        for e in range(0, 8, 2): a(f"v_pk_mul_f32 {v(r0+e,2)}, {v(r0+e,2)}, s[{G_C}:{G_C+1}]")
                    for e in range(4): a(f"v_cvt_pk_bf16_f32 v{r0+8+e}, v{r0+2*e}, v{r0+2*e+1}")
                    a(f"buffer_store_dwordx4 {v(r0+8,4)}, v{OA}, s[8:11], s{G_T0} offen offset:{jj*512} sc1")
                    if thr: a(f"s_waitcnt vmcnt({thr})")
        if not swap: a(f"s_branch L{tag}_end")
    a.label(f"L{tag}_end")
    a("s_waitcnt vmcnt(0)\ns_barrier")
```

```python
from asmlib import *
from layout import *
import math, struct
def fbits(x): return struct.unpack("<I", struct.pack("<f", x))[0]

S_H, S_W = 20, 21
X_TEAM = 19
X_SEG = 22
X_T0, X_T1, X_T2 = 24, 25, 26
X_KV = 27
X_HI = 28
X_XP = 29
X_OUT = 30
X_SPIN = 31
X_GEN = 32
X_FL = 33
X_MSK = 36
X_ONE = 52
X_OSRD = 56
S_DBG = 100
X_XPP, X_OUP, X_PEND = 34, 35, 63
X_U2 = 62
L16, IDX, TSEL, BP, TMP = 0, 1, 2, 4, 5
RADR, OADR, SLO, SHI = 8, 9, 12, 16
WREG0 = 80
LMEM = 0
LKM = 9216
LVM = LKM + 4096
LO = LVM + 4096
LST = LO + 8192
LSTA = 147456
LSTG = 16384

def wreg(n): return (v(WREG0 + 8 * n, 8) if n < 22 else ag(8 * (n - 22), 8))
def wpair(n, jj):
    t = wreg(n); p = t[0]; b = int(t[2:t.index(":")]); return f"{p}[{b+2*jj}:{b+2*jj+1}]"
def KW(c, half): return 2 * c + half
def VW(c, half): return 18 + 2 * c + half
def OWq(T, ks):
    n = 36 + 2 * T + (ks >> 1); t = wreg(n); p = t[0]; b = int(t[2:t.index(":")]) + 4 * (ks & 1)
    return p, b
def cvt(a, d, x, y): a(f"v_cvt_pk_bf16_f32 v{d}, v{x}, v{y}")
def m32(a, d, A, B, C="0"): a(f"v_mfma_f32_16x16x32_bf16 {v(d,4)}, {A}, {B}, {C}")
def m16(a, d, A, B, C="0"): a(f"v_mfma_f32_16x16x16_bf16 {v(d,4)}, {A}, {B}, {C}")

def prologue(a, w, depth=7):
    T = 20; LANE = 79
    DQ, DO, TQ, TV, TO = 78, 77, 76, 75, 74
    base = LSTG + w * 32768
    a(f"""
    v_lshrrev_b32 v{LANE}, 4, v{L16}
    v_lshrrev_b32 v{T}, 2, v{LANE}
    v_and_b32 v{T+1}, 3, v{LANE}
    v_lshlrev_b32 v{T+1}, 4, v{T+1}
    v_lshl_add_u32 v{DQ}, v{T}, 13, v{T+1}
    s_lshl_b32 s{X_T0}, s{S_H}, 8
    s_add_u32 s{X_T0}, s{X_T0}, {w*64}
    v_add_u32 v{DQ}, s{X_T0}, v{DQ}
    s_movk_i32 s{X_T1}, 1152
    s_mul_i32 s{X_T0}, s{S_H}, 147456
    v_lshrrev_b32 v{T}, 1, v{LANE}
    v_and_b32 v{T+1}, 1, v{LANE}
    v_lshlrev_b32 v{T+1}, 4, v{T+1}
    v_mad_u32_u24 v{DO}, v{T}, s{X_T1}, v{T+1}
    v_add_u32 v{DO}, s{X_T0}, v{DO}
    v_lshrrev_b32 v{T+2}, 4, v{LANE}
    v_bfe_u32 v{T+3}, v{LANE}, 2, 2
    v_and_b32 v{T+4}, 3, v{LANE}
    v_lshl_add_u32 v{T}, v{T+2}, 3, v{T+3}
    v_lshlrev_b32 v{T}, 6, v{T}
    v_add_u32 v{T}, {base}, v{T}
    v_lshl_add_u32 v{TV}, v{T+4}, 3, v{T}
    v_lshrrev_b32 v{T+1}, 1, v{T+4}
    v_lshl_add_u32 v{T}, v{T+1}, 5, v{T}
    v_and_b32 v{T+1}, 1, v{T+4}
    v_lshl_add_u32 v{TQ}, v{T+1}, 3, v{T}
    v_lshl_add_u32 v{T}, v{T+2}, 2, v{T+3}
    v_lshlrev_b32 v{T}, 5, v{T}
    v_lshl_add_u32 v{TO}, v{T+4}, 3, v{T}
    v_add_u32 v{TO}, {base}, v{TO}
    s_load_dwordx2 s[64:65], s[0:1], 64
    s_load_dwordx2 s[68:69], s[0:1], 72
    s_load_dwordx2 s[72:73], s[0:1], 80
    s_load_dwordx2 s[{X_OSRD}:{X_OSRD+1}], s[0:1], 96
    s_waitcnt lgkmcnt(0)
    s_mov_b32 s{X_OSRD+2}, 4718592
    s_mov_b32 s{X_OSRD+3}, 0x20000
    """)
    for r in (64, 68, 72): a(f"s_mov_b32 s{r+2}, 4718592\ns_mov_b32 s{r+3}, 0x20000")
    units = [("K", c) for c in range(9)] + [("V", c) for c in range(9)] + [("O", t) for t in range(9)]
    def issue(n):
        m, x = units[n]
        for i in range(4):
            if m == "O": so, vo, sr = (32 * i) * 1152 + (9 * w + x) * 32, DO, 72
            else: so, vo, sr = (64 * x + 16 * i) * 8192, DQ, (64 if m == "K" else 68)
            a(f"s_mov_b32 m0, {base + (n % 8) * 4096 + i * 1024}\ns_mov_b32 s{X_T0}, {so}")
            a.vm(f"buffer_load_dwordx4 v{vo}, s[{sr}:{sr+3}], s{X_T0} offen lds", f"u{n}")
    def consume(n):
        m, x = units[n]; sb = (n % 8) * 4096
        a.wv(f"u{n}")
        for half in range(2):
            for jj in range(4):
                if m == "K": ad, off, op = TQ, sb + (32 * (jj >> 1) + 4 * (jj & 1)) * 64 + 16 * half, KW(x, half)
                elif m == "V": ad, off, op = TV, sb + (32 * (jj >> 1) + 4 * (jj & 1)) * 64 + 32 * half, VW(x, half)
                else: ad, off, op = TO, sb + (64 * half + 16 * jj) * 32, 36 + 2 * x + half
                a.ds(f"ds_read_b64_tr_b16 {wpair(op, jj)}, v{ad} offset:{off}", "tr")
        a.wl0()
    for n in range(depth): issue(n)
    for n in range(27):
        if n + depth < 27: issue(n + depth)
        consume(n)
    qt = w & 1
    a(f"""
    v_bfe_u32 v{T+1}, v{LANE}, 3, 1
    v_cmp_eq_u32 vcc, 1, v{T+1}
    v_mov_b32 v{IDX}, 0x8888
    v_mov_b32 v{T}, 0xdddd
    v_cndmask_b32 v{IDX}, v{IDX}, v{T}, vcc
    v_and_b32 v{T}, 7, v{LANE}
    v_bfe_u32 v{T+1}, v{LANE}, 4, 1
    v_lshlrev_b32 v{T+1}, 2, v{T+1}
    v_sub_u32 v{T}, v{T}, v{T+1}
    v_and_b32 v{T+1}, 1, v{T}
    v_lshlrev_b32 v{T+1}, 4, v{T+1}
    v_mov_b32 v{T+2}, 0x3f80
    v_lshlrev_b32 v{T+2}, v{T+1}, v{T+2}
    v_ashrrev_i32 v{T}, 1, v{T}
    v_cmp_eq_u32 vcc, 0, v{T}
    v_cndmask_b32 v{TSEL}, 0, v{T+2}, vcc
    v_cmp_eq_u32 vcc, 1, v{T}
    v_cndmask_b32 v{TSEL+1}, 0, v{T+2}, vcc
    v_and_b32 v{BP}, 0x33f, v{L16}
    v_bfe_u32 v{T}, v{L16}, 7, 1
    v_lshl_or_b32 v{BP}, v{T}, 6, v{BP}
    v_bfe_u32 v{T}, v{L16}, 6, 1
    v_lshl_or_b32 v{BP}, v{T}, 7, v{BP}
    v_and_b32 v{T}, 16, v{L16}
    v_mov_b32 v{T+2}, 0x3f80
    v_lshlrev_b32 v{T+2}, v{T}, v{T+2}
    v_bfe_u32 v{T}, v{L16}, 5, 3
    """)
    for j in range(4): a(f"v_cmp_eq_u32 vcc, {j}, v{T}\nv_cndmask_b32 v{SLO+j}, 0, v{T+2}, vcc")
    for j in range(4): a(f"v_cmp_eq_u32 vcc, {j+4}, v{T}\nv_cndmask_b32 v{SHI+j}, 0, v{T+2}, vcc")
    a(f"""
    v_bfe_u32 v{T}, v{LANE}, 3, 1
    v_and_b32 v{T+1}, 7, v{LANE}
    v_lshl_add_u32 v{T}, v{T}, 4, v{T+1}
    v_lshrrev_b32 v{T+1}, 5, v{LANE}
    v_bfe_u32 v{T+2}, v{LANE}, 4, 1
    v_lshlrev_b32 v{T+2}, 2, v{T+2}
    v_lshl_add_u32 v{T+1}, v{T+1}, 4, v{T+2}
    v_sub_u32 v{T+1}, v{T}, v{T+1}
    v_add_u32 v{T+1}, {8*qt}, v{T+1}
    """)
    for tt in range(2):
        for r in range(4):
            a(f"v_cmp_le_i32 s[{X_MSK+8*tt+2*r}:{X_MSK+8*tt+2*r+1}], {8*tt+r}, v{T+1}")
    a(f"""
    v_lshrrev_b32 v{T+1}, 4, v{LANE}
    s_mov_b32 s{X_T1}, 36864
    v_and_b32 v{T+2}, 0xf0, v{L16}
    v_mad_u32_u24 v{RADR}, v{T+1}, s{X_T1}, v{T+2}
    v_bfe_u32 v{T+2}, v{LANE}, 4, 1
    v_lshl_add_u32 v{T}, v{T+2}, 3, v{T}
    s_movk_i32 s{X_T1}, 2304
    v_mul_u32_u24 v{OADR}, s{X_T1}, v{T}
    s_lshl_b32 s{X_T0}, s{S_H}, 2
    s_add_u32 s{X_T0}, s{X_T0}, {w}
    s_lshl_b32 s{X_T0}, s{X_T0}, 3
    s_add_u32 s{X_T0}, s{X_T0}, 1152
    s_lshl_b32 s{X_T1}, s{S_H}, 3
    s_add_u32 s{X_T1}, s{X_T1}, {1152 + 128*8}
    s_cmp_lt_u32 s{S_H}, 16
    s_cselect_b32 s{X_U2}, {1 if w == 0 else 0}, 0
    s_cmp_eq_u32 s{X_U2}, 1
    s_cselect_b32 s{X_T1}, s{X_T1}, 0x80000000
    v_mov_b32 v{T+1}, s{X_T0}
    v_mov_b32 v{T+2}, s{X_T1}
    v_cmp_lt_u32 vcc, 31, v{LANE}
    v_cndmask_b32 v{T+1}, v{T+1}, v{T+2}, vcc
    v_add_u32 v{OADR}, v{OADR}, v{T+1}
    s_mov_b32 s{X_ONE}, 0x3f803f80
    s_mov_b32 s{X_ONE+1}, 0x3f803f80
    s_mov_b32 s{X_ONE+2}, 0x3f003f00
    s_mov_b32 s{X_ONE+3}, 0x3f003f00
    s_mov_b32 s{X_SPIN}, 0
    s_mov_b32 s{X_PEND}, 0
    s_mov_b32 s{X_SEG}, s{X_TEAM}
    s_mov_b32 s{X_GEN}, 1
    s_lshl_b32 s{X_FL}, s{X_TEAM}, 7
    s_add_u32 s{X_FL}, s{X_FL}, {XFLAG}
    s_mul_i32 s{X_XP}, s{X_TEAM}, {XP_TEAM}
    s_add_u32 s{X_XP}, s{X_XP}, {XP}
    v_add_u32 v{T}, {LSTA + w*4096}, v{L16}
    ds_write_b128 v{T}, v[2:5]
    ds_write_b128 v{T}, v[8:11] offset:1024
    ds_write_b128 v{T}, v[12:15] offset:2048
    ds_write_b128 v{T}, v[16:19] offset:3072
    s_waitcnt lgkmcnt(0)
    s_barrier
    """)

def loop(a, w, sc, Lend, nteams=2, wait_ready=True, st=False):
    tag = f"x{w}{'s' if sc else 'f'}"
    qt, fh = w & 1, w >> 1
    def spin(): a(f"s_add_u32 s{X_SPIN}, s{X_SPIN}, 1\ns_cmp_gt_u32 s{X_SPIN}, 2000000\ns_cbranch_scc1 {Lend}")
    QF, VF, T0, T1, KA, KB, VA, VB, SP = 8, 24, 40, 44, 48, 52, 56, 60, 76
    RING = [64, 68, 72]; KF = KA
    def flag():
        a("s_barrier")
        if w == 0:
            a(f"""
            s_lshl_b32 s{X_T0}, s{S_H}, 2
            s_add_u32 s{X_T0}, s{X_T0}, s{X_FL}
            v_mov_b32 v6, s{X_GEN}
            v_mov_b32 v7, 0
            s_mov_b64 exec, 1
            buffer_store_dword v6, v7, s[8:11], s{X_T0} offen {sc}
            s_mov_b64 exec, -1
            """)
    def reduce(k):
        STA = TMP
        a(f"v_add_u32 v{STA}, {LSTA + w*4096}, v{L16}")
        a.ds(f"ds_read_b64 v[2:3], v{STA} offset:1024", "st")
        a.ds(f"ds_read_b128 v[72:75], v{STA} offset:2048", "st")
        a.ds(f"ds_read_b128 v[76:79], v{STA} offset:3072", "st")
        a.wl0(); a.wv0()
        Lf = f"L{tag}_fl{k}"
        a(f"v_lshrrev_b32 v7, 2, v{L16}\nv_and_b32 v7, 0x7c, v7")
        a.label(Lf)
        a(f"buffer_load_dword v6, v7, s[8:11], s{X_FL} offen sc1")
        spin()
        a(f"s_waitcnt vmcnt(0)\nv_cmp_gt_u32 vcc, s{X_GEN}, v6\ns_cbranch_vccnz {Lf}")
        a(f"s_lshl_b32 s{X_T0}, s{S_H}, 10\ns_add_u32 s{X_T0}, s{X_T0}, {w*256}\ns_add_u32 s{X_T0}, s{X_T0}, s{X_XPP}")
        for i in range(8):
            a(f"buffer_load_dwordx4 {v(8+4*i,4)}, v2, s[8:11], s{X_T0} offen sc1")
            if i < 7: a(f"s_add_u32 s{X_T0}, s{X_T0}, {4*36864}")
        if w == 0:
            a(f"s_cmp_eq_u32 s{X_U2}, 0\ns_cbranch_scc1 L{tag}_one{k}")
            a(f"s_lshl_b32 s{X_T0}, s{S_H}, 8\ns_add_u32 s{X_T0}, s{X_T0}, {128*256}\ns_add_u32 s{X_T0}, s{X_T0}, s{X_XPP}")
            for i in range(8):
                a(f"buffer_load_dwordx4 {v(40+4*i,4)}, v2, s[8:11], s{X_T0} offen sc1")
                if i < 7: a(f"s_add_u32 s{X_T0}, s{X_T0}, {4*36864}")
            for i in range(16):
                a(f"s_waitcnt vmcnt({15-i})")
                m32(a, 4, "v[72:75]" if i < 8 else "v[76:79]", v(8 + 4 * i, 4), "0" if i == 0 else "v[4:7]")
            a(f"s_branch L{tag}_two{k}")
            a.label(f"L{tag}_one{k}")
        for i in range(8):
            a(f"s_waitcnt vmcnt({7-i})")
            m32(a, 4, "v[72:75]", v(8 + 4 * i, 4), "0" if i == 0 else "v[4:7]")
        if w == 0: a.label(f"L{tag}_two{k}")
        cvt(a, 8, 4, 5); cvt(a, 9, 6, 7)
        a(f"buffer_store_dwordx2 v[8:9], v3, s[{X_OSRD}:{X_OSRD+3}], s{X_OUP} offen")
        a(f"v_add_u32 v10, {LSTA + w*4096}, v{L16}")
        a(f"ds_read_b128 v[2:5], v10")
        a("s_waitcnt lgkmcnt(0)")
    def stamp(i):
        if st: a(f"s_memtime s[76:77]\ns_waitcnt lgkmcnt(0)\ns_sub_u32 s79, s76, s78\ns_mov_b32 s78, s76\ns_add_u32 s{80+i}, s{80+i}, s79"); a.lq = []
    a.label(f"L{tag}_top")
    stamp(0)
    a(f"""
    s_lshl_b32 s{X_KV}, s{X_SEG}, 18
    s_lshl_b32 s{X_T0}, s{S_H}, 13
    s_add_u32 s{X_KV}, s{X_KV}, s{X_T0}
    s_lshl_b32 s{X_HI}, s{X_SEG}, 14
    s_add_u32 s{X_HI}, s{X_HI}, {HIST}
    s_mul_i32 s{X_OUT}, s{X_SEG}, {32*2304}
    """)
    if wait_ready:
        Lw = f"L{tag}_rdy"
        a(f"s_and_b32 s{X_T0}, s{X_SEG}, 7\ns_cmp_ge_u32 s{X_T0}, {nteams}\ns_cbranch_scc1 {Lw}k")
        if w == 0:
            a(f"s_lshr_b32 s{X_T0}, s{X_SEG}, 3\ns_lshl_b32 s{X_T0}, s{X_T0}, 2\nv_mov_b32 v{TMP}, s{X_T0}\ns_mov_b64 exec, 1")
            a.label(Lw)
            a(f"global_load_dword v{TMP+1}, v{TMP}, s[{S_DBG}:{S_DBG+1}] offset:{D_KV*4} sc1")
            a(f"global_load_dword v{TMP+2}, v{TMP}, s[{S_DBG}:{S_DBG+1}] offset:{D_Q*4} sc1")
            spin()
            a(f"""
            s_waitcnt vmcnt(0)
            v_lshl_add_u32 v{TMP+1}, v{TMP+2}, 1, v{TMP+1}
            v_cmp_ne_u32 vcc, 0x80, v{TMP+1}
            s_cbranch_vccz {Lw}j
            s_sleep 16
            s_branch {Lw}
            {Lw}j:
            s_mov_b64 exec, -1
            """)
        a(f"s_barrier\n{Lw}k:")
    a(f"s_add_u32 s{X_T0}, s{X_KV}, {QX + qt*1024}")
    a(f"s_add_u32 s{X_T1}, s{X_T0}, 4096")
    for ks in range(4):
        a.vm(f"buffer_load_dwordx4 {v(QF+4*ks,4)}, v{L16}, s[8:11], s{X_T0 + (ks >> 1)} offen offset:{(ks&1)*2048} sc1", f"q{ks}")
    a(f"s_add_u32 s{X_T2}, s{X_KV}, 4096")
    for tt in range(2):
        buf = KF if tt == 0 else VF
        for ks in range(4):
            a.vm(f"buffer_load_dwordx4 {v(buf+4*ks,4)}, v{L16}, s[8:11], s{X_KV if ks < 2 else X_T2} offen offset:{(ks&1)*2048 + tt*1024} sc1", f"k{tt}{ks}")
    for tt in range(2):
        buf = KF if tt == 0 else VF
        for ks in range(4):
            a.wv(f"q{ks}", f"k{tt}{ks}")
            m32(a, (T0, T1)[tt], v(buf + 4 * ks, 4), v(QF + 4 * ks, 4), "0" if ks == 0 else v((T0, T1)[tt], 4))
    a(f"s_add_u32 s{X_T0}, s{X_KV}, {VX + fh*4096}")
    for i in range(4):
        a.vm(f"buffer_load_dwordx4 {v(VF+4*i,4)}, v{L16}, s[8:11], s{X_T0} offen offset:{i*1024} sc1", "vx")
    a(f"v_mov_b32 v{TMP}, 0xff800000")
    for tt in range(2):
        for r in range(4):
            a(f"v_cndmask_b32 v{(T0,T1)[tt]+r}, v{TMP}, v{(T0,T1)[tt]+r}, s[{X_MSK+8*tt+2*r}:{X_MSK+8*tt+2*r+1}]")
    a(f"s_cmp_eq_u32 s{X_PEND}, 0\ns_cbranch_scc1 L{tag}_nf")
    flag()
    a.label(f"L{tag}_nf")
    stamp(1)
    own = [w, w + 4] + ([8] if w == 3 else [])
    PB = RING[0]
    Lh = f"L{tag}_h"
    a(f"s_cmp_ge_u32 s{X_SEG}, 61\ns_cbranch_scc1 {Lh}")
    if w == 0:
        a(f"v_mov_b32 v{TMP+1}, 8192\ns_mov_b64 exec, 1")
        a.label(Lh + "l")
        a(f"buffer_load_dword v{TMP}, v{TMP+1}, s[8:11], s{X_HI} offen sc1")
        a(f"s_add_u32 s{X_SPIN}, s{X_SPIN}, 1\ns_cmp_gt_u32 s{X_SPIN}, 2000000\ns_cbranch_scc1 {Lh}m")
        a(f"s_waitcnt vmcnt(0)\nv_cmp_eq_u32 vcc, -1, v{TMP}\ns_cbranch_vccz {Lh}m\ns_sleep 10\ns_branch {Lh}l")
        a.label(Lh + "m")
        a("s_mov_b64 exec, -1")
    a("s_barrier")
    a.label(Lh)
    for i, c in enumerate(own):
        a(f"s_add_u32 s{X_T0}, s{X_HI}, {c*1024}")
        a(f"buffer_load_dwordx4 {v(PB+4*i,4)}, v{BP}, s[8:11], s{X_T0} offen sc1")
    spin()
    a("s_waitcnt vmcnt(0)")
    regs = [PB + i for i in range(4 * len(own))]
    a(f"v_max3_u32 v{TMP}, v{regs[0]}, v{regs[1]}, v{regs[2]}")
    rest = regs[3:]
    while len(rest) >= 2:
        a(f"v_max3_u32 v{TMP}, v{TMP}, v{rest[0]}, v{rest[1]}"); rest = rest[2:]
    a(f"v_max_u32 v{TMP}, v{TMP}, v{rest[0]}")
    a(f"v_cmp_eq_u32 vcc, -1, v{TMP}\ns_cbranch_vccz {Lh}k\ns_sleep 2\ns_branch {Lh}")
    a.label(Lh + "k")
    stamp(2)
    a.vq = []
    for i, c in enumerate(own): a.ds(f"ds_write_b128 v{L16}, {v(PB+4*i,4)} offset:{LMEM + c*1024}", "mw")
    a(f"""
    s_add_u32 s{X_T0}, s{X_SEG}, {nteams}
    s_xor_b32 s{X_T0}, s{X_T0}, s{X_SEG}
    s_cmp_ge_u32 s{X_T0}, 8
    s_cselect_b32 s{X_T0}, 0x80000000, 0
    s_add_u32 s{X_T0}, s{X_T0}, {nteams*262144 + w*2048}
    s_add_u32 s{X_T0}, s{X_T0}, s{X_KV}
    v_and_b32 v{SP}, 0x1f0, v{L16}
    v_lshlrev_b32 v{SP}, 2, v{SP}
    v_lshrrev_b32 v{SP+1}, 9, v{L16}
    v_lshl_or_b32 v{SP+1}, v{SP+1}, 24, v{SP}
    v_add_u32 v{SP}, {QX}, v{SP}
    buffer_load_dword v7, v{SP+1}, s[8:11], s{X_T0} offen sc1
    buffer_load_dword v7, v{SP}, s[8:11], s{X_T0} offen sc1
    """)
    for q in (KA, KB, VA, VB): a(f"v_mov_b64 {v(q,2)}, 0\nv_mov_b64 {v(q+2,2)}, 0")
    a.wl0(); a("s_barrier")
    def rd(c): a.ds(f"ds_read_b128 {v(RING[c%3],4)}, v{L16} offset:{LMEM + c*1024}", f"A{c}")
    rd(0); rd(1); rd(2)
    for c in range(9):
        a.wl(f"A{c}")
        for d, op in ((KA, KW(c, 0)), (KB, KW(c, 1)), (VA, VW(c, 0)), (VB, VW(c, 1))):
            a(f"v_smfmac_f32_16x16x64_bf16 {v(d,4)}, {v(RING[c%3],4)}, {wreg(op)}, v{IDX}")
        if c + 3 < 9: rd(c + 3)
    cvt(a, KA, KA, KA + 1); cvt(a, KA + 1, KA + 2, KA + 3); cvt(a, KA + 2, KB, KB + 1); cvt(a, KA + 3, KB + 2, KB + 3)
    m16(a, KB, v(KA, 2), v(TSEL, 2)); m16(a, SP, v(KA + 2, 2), v(TSEL, 2))
    cvt(a, VA, VA, VA + 1); cvt(a, VA + 1, VA + 2, VA + 3); cvt(a, VA + 2, VB, VB + 1); cvt(a, VA + 3, VB + 2, VB + 3)
    a.ds(f"ds_write_b128 v{L16}, {v(VA,4)} offset:{LVM + w*1024}", "kw")
    cvt(a, KA, KB, KB + 1); cvt(a, KA + 1, KB + 2, KB + 3); cvt(a, KA + 2, SP, SP + 1); cvt(a, KA + 3, SP + 2, SP + 3)
    a.ds(f"ds_write_b128 v{L16}, {v(KA,4)} offset:{LKM + w*1024}", "kw")
    a.wl0(); a("s_barrier")
    stamp(3)
    KM = RING + [SP]; TM = VB
    for ks in range(4): a.ds(f"ds_read_b128 {v(KM[ks],4)}, v{L16} offset:{LKM + ks*1024}", f"km{ks}")
    for j in range(2): a.ds(f"ds_read_b128 {v((KA, KB)[j],4)}, v{L16} offset:{LVM + (2*fh+j)*1024}", "vm")
    a(f"v_max3_f32 v{TMP}, v{T0}, v{T0+1}, v{T0+2}\nv_max3_f32 v{TMP+1}, v{T0+3}, v{T1}, v{T1+1}\nv_max3_f32 v{TMP}, v{TMP}, v{T1+2}, v{T1+3}")
    for ks in range(4):
        a.wl(f"km{ks}")
        m32(a, TM, v(KM[ks], 4), v(QF + 4 * ks, 4), "0" if ks == 0 else v(TM, 4))
    ZD, ON, HF, PM, PX = QF, QF + 4, QF + 8, QF + 10, QF + 12
    a(f"""
    v_max3_f32 v{TMP}, v{TMP}, v{TMP+1}, v{TM}
    v_max3_f32 v{TMP}, v{TMP}, v{TM+1}, v{TM+2}
    v_max_f32 v{TMP}, v{TMP}, v{TM+3}
    v_mov_b32 v{TMP+1}, v{TMP}
    v_permlane16_swap_b32 v{TMP}, v{TMP+1}
    v_max_f32 v{TMP}, v{TMP}, v{TMP+1}
    v_mov_b32 v{TMP+1}, v{TMP}
    v_permlane32_swap_b32 v{TMP}, v{TMP+1}
    v_max_f32 v{TMP}, v{TMP}, v{TMP+1}
    """)
    for q in (T0, T1, TM):
        for r in range(4): a(f"v_sub_f32 v{q+r}, v{q+r}, v{TMP}")
    for q in (T0, T1, TM):
        for r in range(4): a(f"v_exp_f32 v{q+r}, v{q+r}")
    a(f"v_mov_b64 {v(ON,2)}, s[{X_ONE}:{X_ONE+1}]\nv_mov_b64 {v(ON+2,2)}, s[{X_ONE}:{X_ONE+1}]\nv_mov_b64 {v(HF,2)}, s[{X_ONE+2}:{X_ONE+3}]")
    cvt(a, PX, T0, T0 + 1); cvt(a, PX + 1, T0 + 2, T0 + 3); cvt(a, PX + 2, T1, T1 + 1); cvt(a, PX + 3, T1 + 2, T1 + 3)
    cvt(a, PM, TM, TM + 1); cvt(a, PM + 1, TM + 2, TM + 3)
    a.wl("vm")
    m32(a, ZD, v(ON, 4), v(PX, 4))
    for i in range(4): m32(a, KM[i], v(VF + 4 * i, 4), v(PX, 4))
    m16(a, ZD, v(HF, 2), v(PM, 2), v(ZD, 4))
    for i in range(4): m16(a, KM[i], v(KA + 2 * i, 2), v(PM, 2), v(KM[i], 4))
    a(f"v_rcp_f32 v{TMP+1}, v{ZD}")
    for i in range(4):
        for r in (0, 2): a(f"v_pk_mul_f32 {v(KM[i]+r,2)}, {v(KM[i]+r,2)}, {v(TMP+1,2)} op_sel_hi:[1,0]")
    for j in range(2):
        d0, d1 = KM[2 * j], KM[2 * j + 1]
        cvt(a, d0, d0, d0 + 1); cvt(a, d0 + 1, d0 + 2, d0 + 3); cvt(a, d0 + 2, d1, d1 + 1); cvt(a, d0 + 3, d1 + 2, d1 + 3)
        a.ds(f"ds_write_b128 v{L16}, {v(d0,4)} offset:{LO + (qt*4 + 2*fh + j)*1024}", "ow")
    a.wl0(); a("s_barrier")
    stamp(4)
    a(f"s_cmp_eq_u32 s{X_PEND}, 0\ns_cbranch_scc1 L{tag}_nr")
    reduce(0)
    a(f"s_add_u32 s{X_GEN}, s{X_GEN}, 1")
    a.label(f"L{tag}_nr")
    stamp(6)
    OB = 8
    for i in range(8): a.ds(f"ds_read_b128 {v(OB+4*i,4)}, v{L16} offset:{LO + i*1024}", f"o{i}")
    a(f"s_mul_i32 s{X_T0}, s{S_H}, 36864\ns_add_u32 s{X_T0}, s{X_T0}, s{X_XP}\ns_add_u32 s{X_T0}, s{X_T0}, {9*w*1024}")
    a(f"s_add_u32 s{X_T1}, s{X_T0}, 4096\ns_add_u32 s{X_T2}, s{X_T0}, 8192")
    def post(T):
        d = 40 + 8 * (T % 5)
        cvt(a, d, d, d + 1); cvt(a, d + 1, d + 2, d + 3); cvt(a, d + 2, d + 4, d + 5); cvt(a, d + 3, d + 6, d + 7)
        a(f"buffer_store_dwordx4 {v(d,4)}, v{L16}, s[8:11], s{X_T0 + (T >> 2)} offen offset:{(T&3)*1024} {sc}")
    for T in range(9):
        d = 40 + 8 * (T % 5)
        for q in range(2):
            for ks in range(4):
                if T == 0: a.wl(f"o{4*q+ks}")
                p, b = OWq(T, ks)
                m32(a, d + 4 * q, f"{p}[{b}:{b+3}]", v(OB + 16 * q + 4 * ks, 4), "0" if ks == 0 else v(d + 4 * q, 4))
            if q == 0 and T > 0: post(T - 1)
    post(8)
    stamp(5)
    a(f"""
    s_mov_b32 s{X_PEND}, 1
    s_mov_b32 s{X_XPP}, s{X_XP}
    s_mov_b32 s{X_OUP}, s{X_OUT}
    s_xor_b32 s{X_XP}, s{X_XP}, {2*MB}
    s_add_u32 s{X_SEG}, s{X_SEG}, {nteams}
    s_cmp_lt_u32 s{X_SEG}, 64
    s_cbranch_scc1 L{tag}_top
    s_waitcnt vmcnt(0)
    """)
    flag()
    reduce(1)
    a("s_waitcnt vmcnt(0)")
```

```python
import sys, re
from asmlib import *
from layout import *
import chain, xteam, g1, bra
NAME = "concat_heads__grouped_kv_mqa__memory_aug_recurrent_mem_tr__prompt_kernel"
G_RND, G_X, G_TK, G_VX, G_MODE, DBG = 95, 96, 97, 98, 99, 100
S_H, S_W = 20, 21
G_REDO, G_NH = 87, 86
CHAIN_P = dict(full=1, d1=22, d1e=12, d3=46, d2e=6, d2=0, wa1=4, midu=2)

def wait_ge(a, lab, idx_val, Lend, sleep=4, solo=False):
    a(f"v_mov_b32 v40, 0\ns_mov_b32 s94, 0")
    if not solo: a(f"s_cmp_lg_u32 s{S_W}, 0\ns_cbranch_scc1 {lab}b")
    a("s_mov_b64 exec, 1")
    a.label(lab)
    for i, (idx, val) in enumerate(idx_val): a(f"global_load_dword v{41+i}, v40, s[{DBG}:{DBG+1}] offset:{idx*4} sc1")
    a(f"s_add_u32 s94, s94, 1\ns_cmp_gt_u32 s94, 2000000\ns_cbranch_scc1 {Lend}\ns_waitcnt vmcnt(0)")
    for i, (idx, val) in enumerate(idx_val):
        a(f"v_cmp_gt_u32 vcc, {val}, v{41+i}" if val <= 64 else f"v_cmp_gt_u32 vcc, {hex(val)}, v{41+i}")
        a(f"s_cbranch_vccnz {lab}z")
    a(f"s_branch {lab}k\n{lab}z:\ns_sleep {sleep}\ns_branch {lab}\n{lab}k:\ns_mov_b64 exec, -1")
    if not solo: a(f"{lab}b:\ns_barrier")

def signal(a, lab, off_expr, inc=1):
    a(f"s_cmp_lg_u32 s{S_W}, 0\ns_cbranch_scc1 {lab}")
    a(f"v_mov_b32 v40, {off_expr}\nv_mov_b32 v41, {inc}\ns_mov_b64 exec, 1\nglobal_atomic_add v40, v41, s[{DBG}:{DBG+1}]\ns_mov_b64 exec, -1")
    a.label(lab)

def verify(a, lab, Lend, role='L_role', solo=False):
    a(f"s_cmp_lg_u32 s{G_MODE}, 0\ns_cbranch_scc1 {lab}k")
    wait_ge(a, lab + "a", [(D_ARR, 256)], Lend, 2, solo)
    a(f"global_load_dwordx4 v[44:47], v40, s[{DBG}:{DBG+1}] offset:{D_XCD*4} sc1")
    a(f"global_load_dwordx4 v[48:51], v40, s[{DBG}:{DBG+1}] offset:{D_XCD*4+16} sc1")
    a(f"s_waitcnt vmcnt(0)\ns_mov_b32 s93, 0\ns_mov_b32 s94, s{G_TK}")
    for y in range(8):
        a(f"""
        v_readfirstlane_b32 s92, v{44+y}
        s_cmp_lg_u32 s92, 32
        s_cselect_b32 s93, 1, s93
        s_cmp_gt_u32 s{G_X}, {y}
        s_cselect_b32 s92, s92, 0
        s_add_u32 s94, s94, s92
        """)
    a(f"""
    s_mov_b32 s{G_MODE}, 1
    s_cmp_eq_u32 s93, 0
    s_cbranch_scc1 {lab}k
    s_mov_b32 s{G_MODE}, 2
    s_lshr_b32 s{G_VX}, s94, 5
    s_and_b32 s{S_H if role else G_NH}, s94, 31
    """)
    if role: a(f"s_waitcnt vmcnt(0) lgkmcnt(0)\ns_barrier\ns_branch {role}")
    else: a("s_mov_b32 s{G_REDO}, 1".replace("{G_REDO}", str(G_REDO)))
    a.label(lab + "k")

def gen(P=None, fake=0):
    P = dict(CHAIN_P, **(P or {}))
    a = Asm(); E = "L_end"
    def tl(i, r=44):
        if not P.get("tl"): return
        a(f"""
        s_memrealtime s[90:91]
        s_lshl_b32 s92, s{G_VX}, 5
        s_add_u32 s92, s92, s{S_H}
        s_lshl_b32 s92, s92, 6
        s_add_u32 s92, s92, {100*MB + 4*i}
        s_waitcnt lgkmcnt(0)
        v_mov_b32 v{r}, s90
        v_mov_b32 v{r+1}, 0
        s_mov_b64 exec, 1
        buffer_store_dword v{r}, v{r+1}, s[8:11], s92 offen
        s_mov_b64 exec, -1
        s_waitcnt vmcnt(0)
        """)
    a(f"""
    s_cmp_ge_u32 s2, 256
    s_cbranch_scc1 {E}
    s_load_dwordx2 s[8:9], s[0:1], 112
    s_load_dwordx2 s[{DBG}:{DBG+1}], s[0:1], 104
    s_getreg_b32 s{G_X}, hwreg(HW_REG_XCC_ID, 0, 3)
    v_lshrrev_b32 v1, 6, v0
    v_readfirstlane_b32 s{S_W}, v1
    v_and_b32 v0, 63, v0
    v_lshlrev_b32 v0, 4, v0
    s_mov_b32 s{G_MODE}, 0
    """)
    if fake == 1: a(f"s_lshr_b32 s{G_X}, s2, 5")
    if fake == 2: a(f"s_lshr_b32 s{G_X}, s2, 6\ns_min_u32 s{G_X}, s{G_X}, 2")
    a(f"""
    s_waitcnt lgkmcnt(0)
    s_mov_b32 s10, 0x10000000
    s_mov_b32 s11, 0x20000
    s_cmp_lg_u32 s{S_W}, 0
    s_cbranch_scc1 L_tk
    s_lshl_b32 s3, s{G_X}, 2
    v_mov_b32 v40, s3
    v_mov_b32 v41, 1
    v_mov_b32 v43, 0
    s_mov_b64 exec, 1
    global_atomic_add v42, v40, v41, s[{DBG}:{DBG+1}] offset:{D_XCD*4} sc0
    s_waitcnt vmcnt(0)
    global_atomic_add v43, v41, s[{DBG}:{DBG+1}] offset:{D_ARR*4}
    ds_write_b32 v43, v42
    s_mov_b64 exec, -1
    s_waitcnt lgkmcnt(0)
    L_tk:
    s_barrier
    v_mov_b32 v43, 0
    ds_read_b32 v42, v43
    s_waitcnt lgkmcnt(0)
    v_readfirstlane_b32 s{G_TK}, v42
    s_barrier
    s_mov_b32 s{G_VX}, s{G_X}
    s_mov_b32 s{S_H}, s{G_TK}
    s_cmp_lt_u32 s{G_TK}, 32
    s_cbranch_scc1 L_role
    """)
    verify(a, "L_v0", E)
    a(f"""
    L_role:
    """)
    tl(0)
    a(f"""
    s_mov_b32 s{G_RND}, 0
    s_cmp_eq_u32 s{G_VX}, 0
    s_cbranch_scc1 L_chain
    """)
    a(f"""
    s_cmp_lt_u32 s{G_VX}, 3
    s_cbranch_scc1 L_half
    s_cmp_gt_u32 s{G_VX}, 3
    s_cbranch_scc1 L_lin
    """)
    verify(a, "L_v3", E)
    a(f"""
    s_lshl_b32 s3, s{S_H}, 15
    s_lshl_b32 s4, s{S_W}, 13
    s_add_u32 s3, s3, s4
    s_add_u32 s3, s3, {HIST}
    s_add_u32 s4, s3, 4096
    v_mov_b64 v[40:41], -1
    v_mov_b64 v[42:43], -1
    """)
    for r in (3, 4):
        for i in range(4): a(f"buffer_store_dwordx4 v[40:43], v0, s[8:11], s{r} offen offset:{i*1024} sc1")
    a(f"""
    s_lshl_b32 s3, s{S_W}, 7
    s_lshl_b32 s4, s{S_H}, 2
    s_add_u32 s3, s3, s4
    s_add_u32 s3, s3, {XFLAG}
    v_mov_b32 v44, 0
    s_mov_b64 exec, 1
    buffer_store_dword v44, v44, s[8:11], s3 offen sc1
    s_mov_b64 exec, -1
    s_waitcnt vmcnt(0)
    s_barrier
    """)
    signal(a, "L_s2", D_HIST * 4)
    a.label("L_lin")
    if P.get("lin", 1):
        a(f"""
        s_load_dwordx4 s[64:67], s[0:1], 56
        s_load_dwordx4 s[68:71], s[0:1], 72
        s_load_dwordx2 s[72:73], s[0:1], 40
        s_sub_u32 s3, s{G_VX}, 3
        s_lshl_b32 s3, s3, 5
        s_add_u32 s3, s3, s{S_H}
        s_lshl_b32 s3, s3, 2
        s_add_u32 s3, s3, s{S_W}
        s_lshl_b32 s3, s3, 12
        s_add_u32 s4, s3, {640*4096}
        v_lshlrev_b32 v40, 2, v0
        s_mov_b32 s79, 0x20000
        s_waitcnt lgkmcnt(0)
        """)
        for src, n in ((66, 4718592), (68, 4718592), (72, 2359296), (64, 4718592), (70, 4718592)):
            a(f"s_mov_b64 s[76:77], s[{src}:{src+1}]\ns_mov_b32 s78, {n}\nbuffer_load_dword v100, v40, s[76:79], s3 offen")
            if n > 2359296: a("buffer_load_dword v100, v40, s[76:79], s4 offen")
    a(f"""
    s_branch L_g1
    L_half:
    s_sub_u32 s{g1.G_MAT}, s{G_VX}, 1
    s_and_b32 s{g1.G_RB}, s{S_H}, 1
    s_lshr_b32 s{g1.G_CB}, s{S_H}, 1
    """)
    g1.tile(a, "h", (lambda i: tl(i, 100)) if P.get("tl") == 4 else None, JN=2)
    if P.get("tl") == 4: tl(7)
    verify(a, "L_v4", E)
    signal(a, "L_s0", D_KV * 4)
    if P.get("tl") == 4: tl(4)
    a(f"""
    L_g1:
    s_add_u32 s3, s{G_VX}, 4
    s_cmp_ge_u32 s{G_VX}, 4
    s_cselect_b32 s4, 8, 0
    s_sub_u32 s3, s3, s4
    s_cmp_eq_u32 s{G_VX}, 3
    s_cselect_b32 s3, 4, s3
    s_add_u32 s4, s{G_VX}, 3
    s_cmp_eq_u32 s{G_RND}, 1
    s_cselect_b32 s3, s4, s3
    s_cmp_ge_u32 s3, 3
    s_cbranch_scc1 L_g1b
    s_lshl_b32 s3, s3, 5
    s_add_u32 s3, s3, s{S_H}
    s_mul_i32 s4, s3, 21846
    s_lshr_b32 s4, s4, 16
    s_mul_i32 s5, s4, 3
    s_sub_u32 s3, s3, s5
    s_add_u32 s{g1.G_RB}, s3, 1
    s_branch L_g1c
    L_g1b:
    s_and_b32 s{g1.G_RB}, s{S_H}, 3
    s_cmp_ge_u32 s3, 5
    s_cselect_b32 s4, 4, 0
    s_cselect_b32 s5, 5, -1
    s_add_u32 s{g1.G_RB}, s{g1.G_RB}, s4
    s_sub_u32 s3, s3, s5
    s_lshl_b32 s3, s3, 3
    s_lshr_b32 s4, s{S_H}, 2
    s_add_u32 s4, s4, s3
    L_g1c:
    s_and_b32 s{g1.G_CB}, s4, 15
    s_lshr_b32 s{g1.G_MAT}, s4, 4
    """)
    def tl1(i):
        lab = a.newlabel("L_tl")
        a(f"s_cmp_eq_u32 s{G_RND}, {P.get('tlr', 0)}\ns_cbranch_scc0 {lab}"); tl(i); a(f"s_memtime s[{70+2*(i-5)}:{71+2*(i-5)}]\ns_waitcnt lgkmcnt(0)")
        if i == 6: a(f"s_sub_u32 s72, s72, s70\nv_mov_b32 v44, s72\ns_mov_b64 exec, 1\nbuffer_store_dword v44, v45, s[8:11], s92 offen offset:4\ns_mov_b64 exec, -1")
        a.label(lab)
    if P.get("tl") == 2: tl1(4)
    g1.tile(a, "g", tl1 if P.get("tl") == 2 else None)
    verify(a, "L_v1", E)
    a(f"""
    s_cmp_eq_u32 s{g1.G_MAT}, 2
    s_cselect_b32 s3, {D_Q*4}, {D_KV*4}
    s_lshl_b32 s4, s{g1.G_RB}, 2
    s_add_u32 s3, s3, s4
    """)
    signal(a, "L_s1", "s3", 2)
    if P.get("tl"):
        a(f"s_cmp_eq_u32 s{G_RND}, 0\ns_cbranch_scc0 L_t1"); tl(1); a("L_t1:"); tl(2)
    a(f"""
    s_add_u32 s{G_RND}, s{G_RND}, 1
    s_cmp_lt_u32 s{G_VX}, 4
    s_cbranch_scc1 L_x
    s_sub_u32 s3, s{G_VX}, 4
    s_lshl_b32 s3, s3, 5
    s_add_u32 s{bra.A_TASK}, s3, s{S_H}
    s_cmp_eq_u32 s{G_RND}, 1
    s_cbranch_scc0 L_r2
    """)
    bra.kvproj(a)
    a(f"""
    s_branch L_g1
    L_r2:
    """)
    bra.task(a, E, (lambda i: tl(i, 244)) if P.get('tl') == 3 else (lambda i: None))
    tl(3)
    a(f"{E}:\ns_endpgm")
    E = "L_endx"
    a.label("L_x")
    a(f"s_sub_u32 s{xteam.X_TEAM}, s{G_VX}, 1")
    for w in range(3): a(f"s_cmp_eq_u32 s{S_W}, {w}\ns_cbranch_scc1 L_xw{w}")
    for w in (3, 0, 1, 2):
        a.label(f"L_xw{w}")
        xteam.prologue(a, w, P.get('xd', 7))
        wait_ge(a, f"L_xb{w}", [(D_HIST, 32)], E)
        tl(2)
        a(f"s_cmp_eq_u32 s{G_MODE}, 2\ns_cbranch_scc1 L_xs{w}")
        xteam.loop(a, w, "", E, nteams=3)
        tl(3)
        a(f"s_branch {E}")
        a.label(f"L_xs{w}")
        xteam.loop(a, w, "sc1", E, nteams=3)
        a(f"s_branch {E}")
    a(f"{E}:\ns_endpgm\nL_role2:\ns_branch L_role")
    E = "L_endc"
    a.label("L_chain")
    a(f"s_mov_b32 s{G_REDO}, 0")
    for w in range(3): a(f"s_cmp_eq_u32 s{S_W}, {w}\ns_cbranch_scc1 L_cw{w}")
    for w in (3, 0, 1, 2):
        a.label(f"L_cw{w}")
        def h_ask():
            a("v_mov_b32 v8, 0\ns_mov_b64 exec, 1")
            a.vm(f"global_load_dwordx4 v[12:15], v8, s[{DBG}:{DBG+1}] offset:{D_XCD*4} sc1", "ask")
            a.vm(f"global_load_dwordx4 v[16:19], v8, s[{DBG}:{DBG+1}] offset:{D_XCD*4+16} sc1", "ask")
            a("s_mov_b64 exec, -1")
        def h_clear():
            a.wv("ask")
            a(f"""
            s_cmp_lg_u32 s{G_MODE}, 0
            s_cbranch_scc1 L_q0k
            v_min3_u32 v10, v12, v13, v14
            v_min3_u32 v10, v10, v15, v16
            v_min3_u32 v10, v10, v17, v18
            v_min_u32 v10, v10, v19
            v_readfirstlane_b32 s92, v10
            s_cmp_eq_u32 s92, 32
            s_cselect_b32 s{G_MODE}, 1, 0
            """)
            verify(a, "L_v20", E, None, True)
            a(f"""
            L_q0k:
            s_cmp_lg_u32 s{G_REDO}, 0
            s_cbranch_scc1 L_q0e
            s_mul_i32 s3, s{S_H}, 9216
            s_add_u32 s3, s3, {MBA}
            s_lshl_b32 s93, s{S_H}, 11
            s_add_u32 s93, s93, {MBB}
            v_mov_b64 v[20:21], -1
            v_mov_b64 v[22:23], -1
            """)
            for sl in range(2):
                for i in range(9):
                    if i % 4 == 0: a(f"s_add_u32 s92, s3, {sl*MBA_SLOT + i*1024}")
                    a.vm(f"buffer_store_dwordx4 v[20:23], v0, s[8:11], s92 offen offset:{(i & 3)*1024} sc1", "clr")
            for i in range(2): a.vm(f"buffer_store_dwordx4 v[20:23], v0, s[8:11], s93 offen offset:{i*1024} sc1", "clr")
            a.label("L_q0e")
        def h_sig():
            a.wv("clr")
            a(f"s_cmp_lg_u32 s{G_REDO}, 0\ns_cbranch_scc1 L_q1e")
            a(f"v_mov_b32 v8, 0\nv_mov_b32 v9, 1\ns_mov_b64 exec, 1")
            a.vm(f"global_atomic_add v8, v9, s[{DBG}:{DBG+1}] offset:{D_CBAR*4}", "x")
            a("s_mov_b64 exec, -1")
            chain.mem0_load(a); chain.warm_mail(a)
            a.label("L_q1e")
        def h_ask2():
            a("v_mov_b32 v36, 0\ns_mov_b64 exec, 1")
            a.vm(f"global_load_dword v37, v36, s[{DBG}:{DBG+1}] offset:{D_CBAR*4} sc1", "ask2")
            a.vm(f"global_load_dword v38, v36, s[{DBG}:{DBG+1}] offset:{D_HIST*4} sc1", "ask2")
            a("s_mov_b64 exec, -1")
        def h_go():
            a.wv("ask2")
            a(f"""
            s_cmp_lg_u32 s{G_REDO}, 0
            s_cbranch_scc1 L_q2e
            s_mov_b32 s94, 0
            s_mov_b64 exec, 1
            L_z0:
            v_add_u32 v37, v38, v37
            v_cmp_gt_u32 vcc, 64, v37
            s_cbranch_vccz L_z0k
            s_sleep 8
            global_load_dword v37, v36, s[{DBG}:{DBG+1}] offset:{D_CBAR*4} sc1
            global_load_dword v38, v36, s[{DBG}:{DBG+1}] offset:{D_HIST*4} sc1
            s_add_u32 s94, s94, 1
            s_cmp_gt_u32 s94, 2000000
            s_cbranch_scc1 {E}
            s_waitcnt vmcnt(0)
            s_branch L_z0
            L_z0k:
            s_mov_b64 exec, -1
            """)
            chain.mem0_store(a)
            a.label("L_q2e")
        def h_end():
            if w == 0:
                a(f"s_cmp_lg_u32 s{G_REDO}, 0\ns_cselect_b32 s{S_H}, s{G_NH}, s{S_H}")
                a(f"v_mov_b32 v8, s{G_MODE}\nv_mov_b32 v9, s{G_VX}\nv_mov_b32 v10, s{S_H}\nv_mov_b32 v11, s{G_REDO}\nv_mov_b32 v12, {chain.LMEM}")
                a("ds_write_b128 v12, v[8:11]\ns_waitcnt lgkmcnt(0)")
            a(f"""
            s_barrier
            v_mov_b32 v12, {chain.LMEM}
            ds_read_b128 v[8:11], v12
            s_waitcnt lgkmcnt(0)
            v_readfirstlane_b32 s{G_MODE}, v8
            v_readfirstlane_b32 s{G_VX}, v9
            v_readfirstlane_b32 s{S_H}, v10
            v_readfirstlane_b32 s92, v11
            s_barrier
            s_cmp_lg_u32 s92, 0
            s_cbranch_scc1 L_role2
            """)
        u = P.get("hk", (7, 11, 17, 24, 28))
        hooks = dict(zip(u, (h_ask, h_clear, h_sig, h_ask2, h_go))) if w == 0 else {}
        hooks[20] = lambda: chain.warm_code(a, w)
        hooks["end"] = h_end
        chain.prologue(a, w, P, hooks)
        tl(1)
        wait_ge(a, f"L_cb{w}", [(D_KV, 64)], E, 1)
        tl(2)
        if P.get("tl"): a("s_memtime s[88:89]\ns_mov_b32 s80, 0\ns_mov_b32 s83, 0\ns_mov_b32 s84, 0\ns_mov_b32 s85, 0")
        a(f"s_cmp_eq_u32 s{G_MODE}, 2\ns_cbranch_scc1 L_cs{w}")
        chain.loop(a, w, P, "", E)
        tl(3)
        if P.get("tl"):
            a(f"s_memtime s[86:87]\ns_waitcnt lgkmcnt(0)\ns_sub_u32 s86, s86, s88\nv_mov_b32 v44, s86\ns_mov_b64 exec, 1\nbuffer_store_dword v44, v45, s[8:11], s92 offen offset:4\ns_waitcnt vmcnt(0)")
            a(f"s_lshl_b32 s92, s{S_H}, 6\ns_add_u32 s92, s92, {101*MB + w*16}\nv_mov_b32 v40, s80\nv_mov_b32 v41, s83\nv_mov_b32 v42, s84\nv_mov_b32 v43, s85\nbuffer_store_dwordx4 v[40:43], v45, s[8:11], s92 offen\ns_waitcnt vmcnt(0)")
        a(f"s_branch {E}")
        a.label(f"L_cs{w}")
        chain.loop(a, w, P, "sc1", E)
        a(f"s_branch {E}")
    a(f"{E}:\ns_endpgm")
    fixed, nhz = fix_hazards(a.lines)
    cnt = {}
    for l in fixed:
        op = l.split(None, 1)[0]
        if not l.endswith(":") and " " in l: cnt[op] = cnt.get(op, 0) + 1
    al = {}
    for op, n in sorted(cnt.items(), key=lambda t: -t[1] * len(t[0])):
        if n * (len(op) - 3) > 400: al[op] = f"i{len(al)}"
    body = []
    for l in fixed:
        l = l.split(";")[0].rstrip()
        if not l: continue
        p = l.split(None, 1)
        if p[0] in al and len(p) > 1: l = al[p[0]] + " " + p[1].replace(", ", ",")
        body.append(l)
    mac = "".join(f".macro {n} a:vararg\n{op} \\a\n.endm\n" for op, n in al.items())
    head = open("cdna_kernels/" + NAME[:-7] + ".s.ref").read().split("; @launch")[0]
    doc = open("header.txt").read() if __import__("os").path.exists("header.txt") else ""
    txt = head + "; @launch grid=(256,1,1) block=(256,1,1) lds=163840\n" + doc
    txt += '.amdgcn_target "amdgcn-amd-amdhsa--gfx950"\n' + mac + f".text\n.globl {NAME}\n.p2align 8\n.type {NAME},@function\n{NAME}:\n"
    txt += "\n".join(body) + '\n.section .rodata,"a"\n.p2align 6\n' + kernel_desc(NAME, 512, 102, 256)
    return txt

if __name__ == "__main__":
    out = sys.argv[1] if len(sys.argv) > 1 else "cdna_kernels/" + NAME[:-7] + ".s"
    P = eval(sys.argv[2]) if len(sys.argv) > 2 else {}
    fake = int(sys.argv[3]) if len(sys.argv) > 3 else 0
    t = gen(P, fake); open(out, "w").write(t); print(out, len(t), "bytes")
```
